```python
import torch

def _softmax(x, axis=-1):
    return torch.softmax(x, dim=axis)
def _gelu(x):
    return torch.nn.functional.gelu(x, approximate="tanh")
def _silu(x):
    return torch.nn.functional.silu(x)
def _sigmoid(x):
    return torch.sigmoid(x)
def _layernorm(x, axis=-1, eps=1e-5):
    m = x.mean(dim=axis, keepdim=True)
    v = x.var(dim=axis, keepdim=True, unbiased=False)
    return (x - m) / torch.sqrt(v + eps)
def _scatter_add(tgt, idx, src, axis=0):
    return tgt.clone().index_add_(axis, idx, src)
def _segment_sum(src, seg, n):
    out = torch.zeros((n,) + src.shape[1:], dtype=src.dtype)
    return out.index_add_(0, seg, src)
def _pad(x, pw):
    flat = tuple(v for pair in reversed(pw) for v in pair)
    return torch.nn.functional.pad(x, flat)

kernel_name = 'parallel_sum__mha_block_cached__mixer_token_mlp__decode'

def setup_inputs():

    _w = (lambda a: (lambda t: t.to(torch.bfloat16) if t.is_floating_point() else t)(torch.as_tensor(a)))
    def _A_setup():
        B, Sq, D = 1, 1, 512
        H, Sk, Dh = 32, 32768, 128
        return {
            "x": _w((lambda *s: torch.randn(*s, dtype=torch.bfloat16) * 0.05)(B, Sq, D)),
            "k_cache": _w((lambda *s: torch.randn(*s, dtype=torch.bfloat16) * 3.2)(B, H, Sk, Dh)),
            "v_cache": _w((lambda *s: torch.randn(*s, dtype=torch.bfloat16) * 0.8)(B, H, Sk, Dh)),
            "wq": _w((lambda *s: torch.randn(*s, dtype=torch.bfloat16) * 3.2)(D, H * Dh) * (D ** -0.5)),
            "wo": _w((lambda *s: torch.randn(*s, dtype=torch.bfloat16) * 0.8)(H * Dh, D) * ((H * Dh) ** -0.5)),
        }
    _A_in = _A_setup()

    def _B_setup():
        B, S, D, F = 1, 1, 512, 1792
        return {
            "x": _w((lambda *s: torch.randn(*s, dtype=torch.bfloat16) * 0.05)(B, S, D)),
            "w1": _w((lambda *s: torch.randn(*s, dtype=torch.bfloat16) * 3.2)(S, F) * (S ** -0.5)),
            "b1": _w((lambda *s: torch.randn(*s, dtype=torch.bfloat16) * 3.2)(F) * 0.02),
            "w2": _w((lambda *s: torch.randn(*s, dtype=torch.bfloat16) * 0.4)(F, S) * (F ** -0.5)),
            "b2": _w((lambda *s: torch.randn(*s, dtype=torch.bfloat16) * 0.4)(S) * 0.02),
        }
    _B_in = _B_setup()

    return {
        "A_x": _A_in["x"],
        "A_k_cache": _A_in["k_cache"],
        "A_v_cache": _A_in["v_cache"],
        "A_wq": _A_in["wq"],
        "A_wo": _A_in["wo"],
        "B_x": _B_in["x"],
        "B_w1": _B_in["w1"],
        "B_b1": _B_in["b1"],
        "B_w2": _B_in["w2"],
        "B_b2": _B_in["b2"],
    }

def reference(A_x, A_k_cache, A_v_cache, A_wq, A_wo, B_x, B_w1, B_b1, B_w2, B_b2):
    def _A_ref(x, k_cache, v_cache, wq, wo):
        B, Sq, D = x.shape
        H, Dh = 32, 128
        q = (lambda x, *d: x.permute(*d))((x @ wq).reshape(B, Sq, H, Dh), 0, 2, 1, 3)
        scores = torch.einsum("bhqd,bhkd->bhqk", q, k_cache) * (Dh ** -0.5)
        p = _softmax(scores, axis=-1)
        o = torch.einsum("bhqk,bhkd->bhqd", p, v_cache)
        return (lambda x, *d: x.permute(*d))(o, 0, 2, 1, 3).reshape(B, Sq, H * Dh) @ wo

    def _B_ref(x, w1, b1, w2, b2):
        B, S, D = x.shape
        h = _layernorm(x, axis=-1)
        u = torch.einsum("bsd,sf->bdf", h, w1) + b1
        u = _gelu(u)
        y = torch.einsum("bdf,fs->bds", u, w2) + b2
        return (lambda x, *d: x.permute(*d))(y, 0, 2, 1)

    x = A_x
    xn = _layernorm(x, axis=-1)
    return x + _A_ref(xn, A_k_cache, A_v_cache, A_wq, A_wo) + _B_ref(xn, B_w1, B_b1, B_w2, B_b2)
```

```python
import re

REG = re.compile(r'^(-|\|)?([vas])(?:(\d+)|\[(\d+):(\d+)\])\|?$')
TRANS = ("v_exp_f32", "v_log_f32", "v_rcp_f32", "v_rsq_f32", "v_sqrt_f32", "v_sin_f32", "v_cos_f32")

def regs(tok):
    tok = tok.strip()
    if tok in ("vcc",):
        return {("s", 106), ("s", 107)}
    if tok == "exec":
        return {("s", 126), ("s", 127)}
    if tok == "m0":
        return {("s", 124)}
    m = REG.match(tok)
    if not m:
        return set()
    f = m.group(2)
    if m.group(3) is not None:
        lo = hi = int(m.group(3))
    else:
        lo, hi = int(m.group(4)), int(m.group(5))
    return {(f, i) for i in range(lo, hi + 1)}

class Ins:
    def __init__(self, text):
        self.text = text
        t = text.split(";")[0].strip()
        self.label = t.endswith(":")
        self.directive = t.startswith(".")
        self.mn = t.split()[0] if t and not self.label else ""
        rest = t[len(self.mn):].strip() if not self.label else ""
        ops = [o.strip() for o in rest.split(",")] if rest else []
        self.mods = ""
        if ops:
            parts = ops[-1].split(None, 1)
            if len(parts) == 2:
                ops[-1], self.mods = parts
        self.ops = ops
        mn = self.mn
        self.valu = mn.startswith("v_")
        self.mfma = mn.startswith("v_mfma")
        self.dot = mn.startswith("v_dot")
        self.trans = mn.startswith(TRANS)
        self.dpp = mn.endswith("_dpp")
        self.perml = mn.startswith("v_permlane")
        self.rdlane = mn.startswith(("v_readlane", "v_readfirstlane"))
        self.vmem = mn.startswith(("buffer_", "global_"))
        self.ds = mn.startswith("ds_")
        self.w, self.r = set(), set()
        R = [regs(o) for o in ops]
        if self.valu:
            self.w = set(R[0])
            for x in R[1:]:
                self.r |= x
            if self.perml:
                self.w |= R[1]; self.r |= R[0]
            if mn.startswith(("v_fmac", "v_dot2c", "v_writelane")) or self.dpp:
                self.r |= R[0]
            if mn.startswith("v_cndmask") and len(ops) == 3:
                self.r |= regs("vcc")
        elif self.vmem:
            if "_load" in mn:
                self.w = set(R[0])
                for x in R[1:]:
                    self.r |= x
            else:
                for x in R:
                    self.r |= x
        elif self.ds:
            if mn.startswith(("ds_read", "ds_bpermute", "ds_swizzle")):
                self.w = set(R[0])
                for x in R[1:]:
                    self.r |= x
            else:
                for x in R:
                    self.r |= x
        elif mn.startswith("s_") and ops:
            if not mn.startswith(("s_cmp", "s_cbranch", "s_branch", "s_waitcnt", "s_nop", "s_setpc", "s_sleep", "s_barrier", "s_setprio")):
                self.w = set(R[0])
            for x in R[1:] if self.w else R:
                self.r |= x
        self.states = 1
        if mn == "s_nop":
            self.states = int(ops[0]) + 1
        if self.label or self.directive or not mn:
            self.states = 0

def vonly(s):
    return {x for x in s if x[0] in "va"}
def sonly(s):
    return {x for x in s if x[0] == "s"}

def need(p, c):
    n = 0
    pv, ps = vonly(p.w), sonly(p.w)
    if p.valu and not p.mfma:
        if c.dpp and pv & vonly(regs(c.ops[1])): n = max(n, 2)
        if c.perml and pv & c.r: n = max(n, 2)
        if c.rdlane and pv & c.r: n = max(n, 1)
        if p.trans and c.valu and not c.trans and pv & c.r: n = max(n, 1)
        if c.mfma and pv & c.r: n = max(n, 3 if p.dot else 2)
        if p.dot and (c.valu or c.vmem or c.ds) and pv & (c.r | c.w):
            if c.mn == p.mn:
                ab = regs(c.ops[1]) | regs(c.ops[2])
                if pv & ab: n = max(n, 3)
            else:
                n = max(n, 3)
        if ps:
            if c.valu and ps & c.r: n = max(n, 4 if c.mn.startswith(("v_readlane", "v_writelane")) else 2)
            if c.vmem and ps & c.r: n = max(n, 5)
            if ps & regs("exec") and (c.dpp or c.mfma or c.perml or c.rdlane): n = max(n, 5)
    if p.mfma:
        if c.mfma:
            ab = regs(c.ops[1]) | regs(c.ops[2])
            cc = regs(c.ops[3])
            if pv & ab: n = max(n, 8)
            if pv & cc and cc != pv: n = max(n, 6)
        elif (c.valu or c.vmem or c.ds) and pv & (c.r | c.w):
            n = max(n, 8)
        if c.valu and not c.mfma and vonly(regs(p.ops[3])) & c.w: n = max(n, 3)
    if p.vmem and "_store" in p.mn and p.mn.endswith(("x3", "x4")):
        if vonly(regs(p.ops[0])) & c.w and (c.valu or c.vmem or c.ds): n = max(n, 2)
    return n

class Asm:
    def __init__(self):
        self.lines = []
    def __call__(self, text):
        for t in text.split("\n"):
            t = t.strip()
            if t:
                self.lines.append(t)
    def finish(self):
        out, hist = [], []
        for t in self.lines:
            c = Ins(t)
            if c.states:
                dist, pad = 0, 0
                for p in reversed(hist):
                    if dist >= 12:
                        break
                    pad = max(pad, need(p, c) - dist)
                    dist += p.states
                if pad > 0:
                    nop = Ins(f"s_nop {pad - 1}")
                    out.append("    " + nop.text)
                    hist.append(nop)
                hist.append(c)
            out.append(t if c.label or c.directive else "    " + t)
        return "\n".join(out) + "\n"
```

```python
import struct, sys, math
from asmlib import Asm

NAME = "parallel_sum__mha_block_cached__mixer_token_mlp__decode_kernel"

def fbits(x):
    return "0x%08x" % struct.unpack("<I", struct.pack("<f", x))[0]

LOG2E = 1.4426950408889634
C2 = -2.0 * math.sqrt(2.0 / math.pi) * LOG2E
C1 = C2 * 0.044715

XN, QP, OP, MLW, BP, OH, RED, BB, DUM, LDS_SIZE = 0, 4096, 6144, 8192, 8256, 8448, 10496, 11520, 11648, 12288
WS_ML, WS_Y, WS_SIZE = 4096, 65536, 65536 + 256 * 2048
WS_DIAG = 1 << 20

vTid, vL16, vWq, vWo = 0, 1, 2, 3
vO, vA, vQ, vMask, vSel0, vSel1 = 4, 8, 12, 16, 20, 24
vM, vML, vL, vS, vT, vP, vU, vAD = 28, 29, 30, 31, 32, 33, 34, 35
vG, vSrc, vX, vW1, vB1, vW2 = 36, 40, 56, 60, 64, 68
vB2, vH0, vH1, vAcc0, vAcc1, vLane, vXc, vStamp = 72, 73, 74, 75, 76, 77, 78, 79
vTmp, vRing = 80, 96
sW, sH, sSp, sR, sKV, sCnt, sTag, sWoff, sLog2e, sT0, sT1 = 3, 50, 51, 52, 53, 54, 55, 56, 57, 58, 59
sInv, sRL, sHiM, sYo, sYo2, sMo, sStampN = 60, 62, 66, 67, 68, 69, 70
KSRD, VSRD, WQSRD, WOSRD, W1SRD, B1SRD, W2SRD, B2SRD, OUTSRD, WSSRD, XSRD = 8, 12, 16, 20, 24, 28, 32, 36, 40, 44, 4
LINK = 48
ARG = 76

def v(i, n=1):
    return f"v{i}" if n == 1 else f"v[{i}:{i+n-1}]"
def s(i, n=1):
    return f"s{i}" if n == 1 else f"s[{i}:{i+n-1}]"

DEFAULT = dict(R=8, S=8, FL=6, alpha=0.34, pre=2, ratio=4, wo_start=8, wo_per=2, side_start=8,
               wflags="", kvflags="nt", diag=0, spin=1 << 20, hmap="l")

class Gen:
    def __init__(self, **kw):
        self.c = dict(DEFAULT); self.c.update(kw)
        self.a = Asm()
        self.vm = []
        self.stubs = []
        self.nkv = 0
        self.nwo = 0

    def vmem(self, text, tag):
        self.a(text); self.vm.append(tag)
    def wait_for(self, tag):
        n = len(self.vm) - 1 - self.vm.index(tag)
        assert n <= 63, n
        self.a(f"s_waitcnt vmcnt({n})")

    def stamp(self):
        if not self.c["diag"]:
            return
        a = self.a
        a(f"s_memrealtime s[74:75]\ns_waitcnt lgkmcnt(0)\ns_mov_b32 m0, {s(sStampN)}\nv_writelane_b32 {v(vStamp)}, s74, m0\ns_add_u32 {s(sStampN)}, {s(sStampN)}, 1")

    def kv_load(self):
        i = self.nkv; n = i // 2; R = self.c["R"]
        r = vRing + (n % R) * 8 + (i & 1) * 4
        srd = VSRD if i & 1 else KSRD
        self.vmem(f"buffer_load_dwordx4 {v(r,4)}, {v(vL16)}, {s(srd,4)}, {s(sKV)} offen {self.c['kvflags']}", ("kv", i))
        if i & 1:
            self.a(f"s_add_u32 {s(sKV)}, {s(sKV)}, 4096")
        self.nkv += 1

    def wo_load(self):
        t = self.nwo
        if t % 4 == 0 and t:
            self.a(f"s_add_u32 {s(sWoff)}, {s(sWoff)}, 4096")
        self.vmem(f"buffer_load_dwordx4 a[{4*t}:{4*t+3}], {v(vWo)}, {s(WOSRD,4)}, {s(sWoff)} offen offset:{(t%4)*1024} {self.c['wflags']}", ("wo", t))
        self.nwo += 1

    def allreduce(self, regs, tmp, op="add"):
        a = self.a
        for ror in (8, 4, 2, 1):
            for r in regs:
                a(f"v_{op}_f32_dpp {v(r)}, {v(r)}, {v(r)} row_ror:{ror} row_mask:0xf bank_mask:0xf")
        self.rowreduce(regs, tmp, op)
    def rowreduce(self, regs, tmp, op="add"):
        a = self.a
        for sw in (16, 32):
            for k, r in enumerate(regs):
                a(f"v_mov_b32 {v(tmp+k)}, {v(r)}")
            for k, r in enumerate(regs):
                a(f"v_permlane{sw}_swap_b32 {v(r)}, {v(tmp+k)}")
            for k, r in enumerate(regs):
                a(f"v_{op}_f32 {v(r)}, {v(r)}, {v(tmp+k)}")
    def unpack(self, dlo, dhi, src):
        self.a(f"v_lshlrev_b32 {v(dlo)}, 16, {v(src)}\nv_and_b32 {v(dhi)}, {s(sHiM)}, {v(src)}")
    def round1(self, r):
        self.a(f"v_cvt_pk_bf16_f32 {v(r)}, {v(r)}, {v(r)}\nv_lshlrev_b32 {v(r)}, 16, {v(r)}")

    def ln_sum(self, f, acc, tmp):
        a = self.a
        for k in range(4):
            self.unpack(f + 2*k, f + 2*k + 1, vX + k)
        a(f"v_add_f32 {v(acc)}, {v(f)}, {v(f+1)}\nv_add_f32 {v(tmp)}, {v(f+2)}, {v(f+3)}")
        a(f"v_add_f32 {v(acc)}, {v(acc)}, {v(tmp)}\nv_add_f32 {v(tmp)}, {v(f+4)}, {v(f+5)}")
        a(f"v_add_f32 {v(acc)}, {v(acc)}, {v(tmp)}\nv_add_f32 {v(tmp)}, {v(f+6)}, {v(f+7)}")
        a(f"v_add_f32 {v(acc)}, {v(acc)}, {v(tmp)}")
        self.allreduce([acc], tmp)
        a(f"v_mul_f32 {v(acc)}, {fbits(1/512)}, {v(acc)}")
    def ln_var(self, f, mean, sd, rs, tmp):
        a = self.a
        for k in range(8):
            a(f"v_sub_f32 {v(tmp)}, {v(f+k)}, {v(mean)}")
            a(f"v_mul_f32 {v(sd)}, {v(tmp)}, {v(tmp)}" if k == 0 else f"v_fmac_f32 {v(sd)}, {v(tmp)}, {v(tmp)}")
        self.allreduce([sd], tmp)
        a(f"v_mul_f32 {v(sd)}, {fbits(1/512)}, {v(sd)}")
        self.round1(mean)
        self.round1(sd)
        a(f"v_add_f32 {v(sd)}, {fbits(1e-5)}, {v(sd)}")
        self.round1(sd)
        a(f"v_sqrt_f32 {v(sd)}, {v(sd)}")
        self.round1(sd)
        a(f"v_rcp_f32 {v(rs)}, {v(sd)}")
    def ln_pair(self, dst, f0, f1, mean, sd, rs, t):
        a = self.a
        a(f"v_sub_f32 {v(f0)}, {v(f0)}, {v(mean)}\nv_sub_f32 {v(f1)}, {v(f1)}, {v(mean)}")
        a(f"v_cvt_pk_bf16_f32 {v(t)}, {v(f0)}, {v(f1)}")
        self.unpack(f0, f1, t)
        for f in (f0, f1):
            a(f"v_mul_f32 {v(t)}, {v(f)}, {v(rs)}")
            a(f"v_fma_f32 {v(f)}, -{v(t)}, {v(sd)}, {v(f)}")
            a(f"v_fma_f32 {v(f)}, {v(f)}, {v(rs)}, {v(t)}")
        a(f"v_cvt_pk_bf16_f32 {v(dst)}, {v(f0)}, {v(f1)}")

    def side_blocks(self):
        a = self.a
        f, mean, sd, rs, t = vTmp, vTmp + 8, vTmp + 9, vTmp + 10, vTmp + 11
        def b_sum():
            a(f"s_lshl_b32 {s(sT0)}, {s(sR)}, 2\ns_lshl_b32 {s(sT1)}, {s(sW)}, 10\ns_add_u32 {s(sT0)}, {s(sT0)}, {s(sT1)}")
            a(f"v_mov_b32 {v(vH0)}, {s(sT0)}\nds_read_b32 {v(vH1)}, {v(vH0)} offset:{XN}")
            self.ln_sum(f, mean, t)
        def b_var():
            self.ln_var(f, mean, sd, rs, t)
            a("s_waitcnt lgkmcnt(0)")
            self.unpack(f, f + 1, vH1)
            self.ln_pair(vH1, f, f + 1, mean, sd, rs, t)
            a(f"v_lshlrev_b32 {v(vH0)}, 16, {v(vH1)}\nv_and_b32 {v(vH1)}, {s(sHiM)}, {v(vH1)}")
            a(f"v_mov_b32 {v(vAcc0)}, 0\nv_mov_b32 {v(vAcc1)}, 0")
        def piece(k, col):
            def run():
                wl, wh, bl, bh, u0, u1, t0, t1 = range(vTmp, vTmp + 8)
                if k == 0 and col == 0:
                    self.wait_for("w2")
                if col == 0:
                    self.unpack(wl, wh, vW1 + k)
                    self.unpack(bl, bh, vB1 + k)
                h = vH1 if col else vH0
                acc = vAcc1 if col else vAcc0
                a(f"v_mul_f32 {v(u0)}, {v(h)}, {v(wl)}\nv_mul_f32 {v(u1)}, {v(h)}, {v(wh)}")
                a(f"v_cvt_pk_bf16_f32 {v(t0)}, {v(u0)}, {v(u1)}")
                self.unpack(u0, u1, t0)
                a(f"v_add_f32 {v(u0)}, {v(u0)}, {v(bl)}\nv_add_f32 {v(u1)}, {v(u1)}, {v(bh)}")
                a(f"v_cvt_pk_bf16_f32 {v(t0)}, {v(u0)}, {v(u1)}")
                self.unpack(u0, u1, t0)
                a(f"v_mul_f32 {v(t0)}, {v(u0)}, {v(u0)}\nv_mul_f32 {v(t1)}, {v(u1)}, {v(u1)}")
                a(f"v_mov_b32 {v(vTmp+8)}, {fbits(C1)}")
                a(f"v_fmaak_f32 {v(t0)}, {v(t0)}, {v(vTmp+8)}, {fbits(C2)}\nv_fmaak_f32 {v(t1)}, {v(t1)}, {v(vTmp+8)}, {fbits(C2)}")
                a(f"v_mul_f32 {v(t0)}, {v(t0)}, {v(u0)}\nv_mul_f32 {v(t1)}, {v(t1)}, {v(u1)}")
                a(f"v_exp_f32 {v(t0)}, {v(t0)}\nv_exp_f32 {v(t1)}, {v(t1)}")
                a(f"v_add_f32 {v(t0)}, 1.0, {v(t0)}\nv_add_f32 {v(t1)}, 1.0, {v(t1)}")
                a(f"v_rcp_f32 {v(t0)}, {v(t0)}\nv_rcp_f32 {v(t1)}, {v(t1)}")
                a(f"v_mul_f32 {v(u0)}, {v(u0)}, {v(t0)}\nv_mul_f32 {v(u1)}, {v(u1)}, {v(t1)}")
                a(f"v_cvt_pk_bf16_f32 {v(t0)}, {v(u0)}, {v(u1)}")
                a(f"v_dot2_f32_bf16 {v(acc)}, {v(t0)}, {v(vW2+k)}, {v(acc)}")
            return run
        def b_red():
            self.allreduce([vAcc0, vAcc1], vTmp)
            a(f"s_lshl_b32 {s(sT0)}, {s(sW)}, 3\nv_mov_b32 {v(vTmp)}, {s(sT0)}")
            a(f"v_mov_b32 {v(vTmp+2)}, {v(vAcc0)}\nv_mov_b32 {v(vTmp+3)}, {v(vAcc1)}")
            a(f"ds_write_b64 {v(vTmp)}, {v(vTmp+2,2)} offset:{BP}")
        return [b_sum, b_var] + [piece(k, c) for k in range(4) for c in range(2)] + [b_red]

    def step(self, n, na, nb, extra=None, label=""):
        a = self.a; R = self.c["R"]
        K = vRing + (n % R) * 8; V = K + 4
        self.wait_for(("kv", 2*n))
        for _ in range(na):
            self.kv_load()
        a(f"v_dot2_f32_bf16 {v(vS)}, {v(K)}, {v(vQ)}, 0")
        for k in range(1, 4):
            a(f"v_dot2_f32_bf16 {v(vS)}, {v(K+k)}, {v(vQ+k)}, {v(vS)}")
        for ror in (8, 4, 2, 1):
            a(f"v_add_f32_dpp {v(vS)}, {v(vS)}, {v(vS)} row_ror:{ror} row_mask:0xf bank_mask:0xf")
        self.round1(vS)
        a(f"v_mul_f32 {v(vS)}, {fbits(128 ** -0.5)}, {v(vS)}")
        self.round1(vS)
        a(f"v_cmp_gt_f32 vcc, {v(vS)}, {v(vM)}\ns_cbranch_vccnz L_stub{label}\nL_back{label}:")
        self.stubs.append(label)
        a(f"v_fma_f32 {v(vT)}, {v(vS)}, {s(sLog2e)}, -{v(vML)}")
        a(f"v_exp_f32 {v(vP)}, {v(vT)}")
        a(f"v_cvt_pk_bf16_f32 {v(vT)}, {v(vP)}, {v(vP)}")
        a(f"v_add_f32 {v(vL)}, {v(vL)}, {v(vP)}")
        for k in range(4):
            a(f"v_and_b32 {v(vA+k)}, {v(vT)}, {v(vMask+k)}")
        self.wait_for(("kv", 2*n + 1))
        for _ in range(nb):
            self.kv_load()
        a(f"v_mfma_f32_16x16x32_bf16 {v(vO,4)}, {v(vA,4)}, {v(V,4)}, {v(vO,4)}")
        if extra:
            extra()

    def srd(self, q, size):
        self.a(f"s_mov_b32 {s(q+2)}, {size}\ns_mov_b32 {s(q+3)}, 0x20000")

    def build(self):
        a, c = self.a, self.c
        R, S, FL = c["R"], c["S"], c["FL"]
        a(f"{NAME}:")
        a("s_cmp_ge_u32 s2, 256\ns_cbranch_scc1 L_done")
        a(f"s_load_dwordx16 {s(ARG,16)}, s[0:1], 0\ns_load_dwordx8 {s(ARG+16,8)}, s[0:1], 64\ns_load_dwordx2 {s(WSSRD,2)}, s[0:1], 96")
        if c["diag"]:
            a(f"s_memrealtime s[72:73]\ns_mov_b32 {s(sStampN)}, 1\nv_mov_b32 {v(vStamp)}, 0")
        a(f"v_lshrrev_b32 {v(vT)}, 6, {v(vTid)}\nv_and_b32 {v(vLane)}, 63, {v(vTid)}")
        a(f"v_readfirstlane_b32 {s(sW)}, {v(vT)}")
        a(f"v_lshlrev_b32 {v(vL16)}, 4, {v(vLane)}")
        if c["hmap"] == "l":
            a(f"s_and_b32 {s(sH)}, s2, 31\ns_lshr_b32 {s(sSp)}, s2, 5")
        else:
            a(f"s_lshr_b32 {s(sH)}, s2, 3\ns_and_b32 {s(sSp)}, s2, 7")
        a(f"s_lshl_b32 {s(sR)}, {s(sH)}, 3\ns_add_u32 {s(sR)}, {s(sR)}, {s(sSp)}")
        a(f"s_lshl_b32 {s(sT0)}, {s(sR)}, 20\ns_lshl_b32 {s(sKV)}, {s(sW)}, 10")
        self.srd(KSRD, 1 << 20); self.srd(VSRD, 1 << 20); self.srd(WQSRD, 4 << 20); self.srd(XSRD, 1024)
        a(f"v_lshrrev_b32 {v(vU)}, 4, {v(vLane)}\nv_and_b32 {v(vT)}, 0xf0, {v(vL16)}")
        a(f"v_lshl_add_u32 {v(vWq)}, {v(vU)}, 18, {v(vT)}\nv_lshl_add_u32 {v(vWo)}, {v(vU)}, 15, {v(vT)}")
        a(f"s_lshl_b32 {s(sWoff)}, {s(sW)}, 20\ns_lshl_b32 {s(sT1)}, {s(sH)}, 8\ns_add_u32 {s(sWoff)}, {s(sWoff)}, {s(sT1)}")
        a("s_waitcnt lgkmcnt(0)")
        a(f"s_mov_b64 {s(XSRD,2)}, {s(ARG,2)}")
        a(f"s_add_u32 {s(KSRD)}, {s(ARG+2)}, {s(sT0)}\ns_addc_u32 {s(KSRD+1)}, {s(ARG+3)}, 0")
        self.vmem(f"buffer_load_dwordx4 {v(vX,4)}, {v(vL16)}, {s(XSRD,4)}, 0 offen", "x")
        a(f"s_add_u32 {s(VSRD)}, {s(ARG+4)}, {s(sT0)}\ns_addc_u32 {s(VSRD+1)}, {s(ARG+5)}, 0")
        a(f"s_mov_b64 {s(WQSRD,2)}, {s(ARG+6,2)}")
        for _ in range(c["pre"]):
            self.kv_load()
        for t in range(32):
            self.vmem(f"buffer_load_dwordx4 a[{4*t}:{4*t+3}], {v(vWq)}, {s(WQSRD,4)}, {s(sWoff)} offen {c['wflags']}", ("wq", t))
            if t < 31:
                a(f"s_add_u32 {s(sWoff)}, {s(sWoff)}, 8192")
            if (t + 1) % c["ratio"] == 0 and self.nkv < 2 * S:
                self.kv_load()
        while self.nkv < 2 * S:
            self.kv_load()
        a(f"s_load_dword {s(sTag)}, {s(WSSRD,2)}, 0")
        for q, arg, size in ((W1SRD, 12, 3584), (B1SRD, 14, 3584), (W2SRD, 16, 3584), (B2SRD, 18, 2), (WOSRD, 8, 4 << 20), (OUTSRD, 20, 1024)):
            a(f"s_mov_b64 {s(q,2)}, {s(ARG+arg,2)}")
            self.srd(q, size)
        self.srd(WSSRD, (WS_DIAG + 256 * 4 * 256) if c["diag"] else WS_SIZE)
        a(f"v_lshlrev_b32 {v(vT)}, 4, {v(vTid)}\nv_mov_b32 {v(vU)}, 0")
        self.vmem(f"buffer_load_dwordx4 {v(vW1,4)}, {v(vT)}, {s(W1SRD,4)}, 0 offen", "w1")
        self.vmem(f"buffer_load_dwordx4 {v(vB1,4)}, {v(vT)}, {s(B1SRD,4)}, 0 offen", "b1")
        self.vmem(f"buffer_load_ushort {v(vB2)}, {v(vU)}, {s(B2SRD,4)}, 0 offen", "b2")
        self.vmem(f"buffer_load_dwordx4 {v(vW2,4)}, {v(vT)}, {s(W2SRD,4)}, 0 offen", "w2")
        a(f"s_lshl_b32 {s(sWoff)}, {s(sH)}, 17\ns_lshl_b32 {s(sT1)}, {s(sW)}, 8\ns_add_u32 {s(sWoff)}, {s(sWoff)}, {s(sT1)}")
        a(f"s_mov_b32 {s(sHiM)}, 0xffff0000\ns_mov_b32 {s(sLog2e)}, {fbits(LOG2E)}")
        a(f"v_and_b32 {v(vT)}, 1, {v(vLane)}\nv_lshlrev_b32 {v(vT)}, 4, {v(vT)}\nv_mov_b32 {v(vU)}, 0xffff\nv_lshlrev_b32 {v(vU)}, {v(vT)}, {v(vU)}")
        a(f"v_bfe_u32 {v(vT)}, {v(vLane)}, 1, 2\nv_mov_b32 {v(vP)}, 0x0c0c0c0c\ns_mov_b32 {s(sT0)}, 0x01000100\ns_mov_b32 {s(sT1)}, 0x03020302")
        for k in range(4):
            a(f"v_cmp_eq_u32 vcc, {k}, {v(vT)}\nv_cndmask_b32 {v(vMask+k)}, 0, {v(vU)}, vcc")
        for k in range(4):
            a(f"v_bfi_b32 {v(vSel0+k)}, {v(vMask+k)}, {s(sT0)}, {v(vP)}\nv_bfi_b32 {v(vSel1+k)}, {v(vMask+k)}, {s(sT1)}, {v(vP)}")
        a(f"v_and_b32 {v(vAD)}, 15, {v(vLane)}\nv_lshlrev_b32 {v(vAD)}, 5, {v(vAD)}\nv_and_b32 {v(vT)}, 16, {v(vLane)}\nv_add_u32 {v(vAD)}, {v(vAD)}, {v(vT)}")
        for k in range(4):
            a(f"v_mov_b32 {v(vO+k)}, 0")
        a(f"v_mov_b32 {v(vM)}, 0xff800000\nv_mov_b32 {v(vML)}, 0xff800000\nv_mov_b32 {v(vL)}, 0")
        f, mean, sd, rs, t = vTmp, vTmp + 8, vTmp + 9, vTmp + 10, vTmp + 11
        self.wait_for("x")
        self.stamp()
        self.ln_sum(f, mean, t)
        self.ln_var(f, mean, sd, rs, t)
        for k in range(4):
            self.ln_pair(vX + k, f + 2*k, f + 2*k + 1, mean, sd, rs, t)
        a(f"s_lshl_b32 {s(sT0)}, {s(sW)}, 10\nv_add_u32 {v(vT)}, {s(sT0)}, {v(vL16)}")
        a(f"ds_write_b128 {v(vT)}, {v(vX,4)} offset:{XN}")
        a(f"s_mul_i32 {s(sT0)}, {s(sW)}, 1280\nv_and_b32 {v(vT)}, 0x30, {v(vLane)}\nv_lshlrev_b32 {v(vT)}, 2, {v(vT)}\nv_add_u32 {v(vT)}, {s(sT0)}, {v(vT)}")
        a("s_waitcnt lgkmcnt(0)")
        for k in range(4):
            a(f"ds_read_b128 {v(vSrc+4*k,4)}, {v(vT)} offset:{XN + 16*k}")
        a(f"s_add_u32 {s(sTag)}, {s(sTag)}, 1\ns_and_b32 {s(sTag)}, {s(sTag)}, 0xff")
        a("s_waitcnt lgkmcnt(0)")
        self.stamp()
        gemv_waits = [len(self.vm) - 1 - self.vm.index(("wq", t)) for t in range(32)]
        a(f"s_call_b64 {s(LINK,2)}, L_gemv")
        self.stamp()
        a(f"s_lshl_b32 {s(sT0)}, {s(sW)}, 9\nv_add_u32 {v(vU)}, {s(sT0)}, {v(vAD)}")
        a(f"ds_write_b128 {v(vU)}, {v(vG,4)} offset:{QP}")
        a(f"v_and_b32 {v(vT)}, 0xf0, {v(vL16)}\nv_lshlrev_b32 {v(vT)}, 1, {v(vT)}")
        a("s_waitcnt lgkmcnt(0)\ns_barrier")
        for w in range(4):
            for hf in range(2):
                dst = (vSrc + 8*w + 4*hf) if w < 2 else (vTmp + 8*(w-2) + 4*hf)
                a(f"ds_read_b128 {v(dst,4)}, {v(vT)} offset:{QP + 512*w + 16*hf}")
        a("s_waitcnt lgkmcnt(0)")
        for k in range(8):
            a(f"v_add_f32 {v(vSrc+k)}, {v(vSrc+k)}, {v(vSrc+8+k)}\nv_add_f32 {v(vTmp+k)}, {v(vTmp+k)}, {v(vTmp+8+k)}")
        for k in range(8):
            a(f"v_add_f32 {v(vSrc+k)}, {v(vSrc+k)}, {v(vTmp+k)}")
        for k in range(4):
            a(f"v_cvt_pk_bf16_f32 {v(vQ+k)}, {v(vSrc+2*k)}, {v(vSrc+2*k+1)}")
        self.stamp()

        side = self.side_blocks()
        last_special = max(c["side_start"] + len(side), c["wo_start"] + -(-32 // c["wo_per"]))
        n = 0
        while True:
            cnt = []
            for half in (0, 1):
                hs = 2*n + half
                target = max(hs + 1 + FL, 2*S + int((hs + 1) * c["alpha"]))
                limit = 2*n + 2*R + half
                have = self.nkv + sum(cnt)
                cnt.append(max(0, min(target, limit) - have))
            def extra(n=n):
                if n >= c["wo_start"]:
                    for _ in range(c["wo_per"]):
                        if self.nwo < 32:
                            self.wo_load()
                k = n - c["side_start"]
                if 0 <= k < len(side):
                    side[k]()
            self.step(n, cnt[0], cnt[1], extra, label=f"_p{n}")
            n += 1
            if n % R == 0:
                self.stamp()
                if n >= last_special and self.nkv == 2*n + FL:
                    break
        assert self.nwo == 32
        nloop = (256 - n) // R
        a(f"s_mov_b32 {s(sCnt)}, {nloop}")
        self.vm = [("kv", i) for i in range(2*n, self.nkv)]
        a("s_waitcnt vmcnt(%d)" % (FL - 1))
        a("L_loop:")
        for k in range(R):
            self.step(n + k, 1, 1, label=f"_l{k}")
        self.stamp()
        a(f"s_sub_u32 {s(sCnt)}, {s(sCnt)}, 1\ns_cmp_lg_u32 {s(sCnt)}, 0\ns_cbranch_scc1 L_loop")

        self.rowreduce([vL], vT)
        a(f"v_mov_b32 {v(vTmp)}, {v(vM)}\nv_mov_b32 {v(vTmp+1)}, {v(vL)}")
        a(f"s_lshl_b32 {s(sT0)}, {s(sW)}, 3\nv_mov_b32 {v(vT)}, {s(sT0)}")
        a(f"ds_write_b64 {v(vT)}, {v(vTmp,2)} offset:{MLW}")
        a(f"ds_write_b128 {v(vU)}, {v(vO,4)} offset:{OP}")
        a(f"v_lshlrev_b32 {v(vT)}, 3, {v(vLane)}\nv_mov_b32 {v(vP)}, 0")
        a("s_waitcnt lgkmcnt(0)\ns_barrier")
        ml, op, bp = vTmp, vSrc, vSrc + 8
        a(f"ds_read_b128 {v(ml,4)}, {v(vP)} offset:{MLW}\nds_read_b128 {v(ml+4,4)}, {v(vP)} offset:{MLW+16}")
        for w in range(4):
            a(f"ds_read_b64 {v(op+2*w,2)}, {v(vT)} offset:{OP + 512*w}")
        a(f"ds_read_b128 {v(bp,4)}, {v(vP)} offset:{BP}\nds_read_b128 {v(bp+4,4)}, {v(vP)} offset:{BP+16}")
        a(f"s_lshl_b32 {s(sT0)}, {s(sW)}, 9\nv_lshlrev_b32 {v(vT)}, 2, {v(vLane)}\nv_add_u32 {v(vT)}, {s(sT0)}, {v(vT)}")
        a("s_waitcnt lgkmcnt(6)")
        a(f"v_max3_f32 {v(vM)}, {v(ml)}, {v(ml+2)}, {v(ml+4)}\nv_max_f32 {v(vM)}, {v(vM)}, {v(ml+6)}")
        a(f"v_mul_f32 {v(vML)}, {s(sLog2e)}, {v(vM)}")
        for w in range(4):
            a(f"v_mul_f32 {v(ml+2*w)}, {s(sLog2e)}, {v(ml+2*w)}")
        for w in range(4):
            a(f"v_sub_f32 {v(ml+2*w)}, {v(ml+2*w)}, {v(vML)}")
        for w in range(4):
            a(f"v_exp_f32 {v(ml+2*w)}, {v(ml+2*w)}")
        a("s_waitcnt lgkmcnt(2)")
        o0, o1, hi, lo = vTmp + 8, vTmp + 9, vTmp + 10, vTmp + 11
        a(f"v_mul_f32 {v(o0)}, {v(ml)}, {v(op)}\nv_mul_f32 {v(o1)}, {v(ml)}, {v(op+1)}")
        for w in range(1, 4):
            a(f"v_fmac_f32 {v(o0)}, {v(ml+2*w)}, {v(op+2*w)}\nv_fmac_f32 {v(o1)}, {v(ml+2*w)}, {v(op+2*w+1)}")
        a(f"v_cvt_pk_bf16_f32 {v(hi)}, {v(o0)}, {v(o1)}")
        self.unpack(vTmp + 12, vTmp + 13, hi)
        a(f"v_sub_f32 {v(o0)}, {v(o0)}, {v(vTmp+12)}\nv_sub_f32 {v(o1)}, {v(o1)}, {v(vTmp+13)}")
        a(f"v_cvt_pk_bf16_f32 {v(lo)}, {v(o0)}, {v(o1)}")
        a(f"ds_write_b32 {v(vT)}, {v(hi)} offset:{OH}\nds_write_b32 {v(vT)}, {v(lo)} offset:{OH+256}")
        rec = vTmp + 12
        a(f"v_mul_f32 {v(rec+1)}, {v(ml)}, {v(ml+1)}")
        for w in range(1, 4):
            a(f"v_fmac_f32 {v(rec+1)}, {v(ml+2*w)}, {v(ml+2*w+1)}")
        a(f"v_and_b32 {v(vT)}, 8, {v(vLane)}\nv_lshlrev_b32 {v(vT)}, 5, {v(vT)}\nv_and_b32 {v(vS)}, 0x30, {v(vLane)}\nv_lshl_add_u32 {v(vT)}, {v(vS)}, 2, {v(vT)}\nv_add_u32 {v(vT)}, {s(sT0)}, {v(vT)}")
        a("s_waitcnt lgkmcnt(0)")
        for j in range(2):
            a(f"v_add_f32 {v(rec+2+j)}, {v(bp+j)}, {v(bp+2+j)}\nv_add_f32 {v(vS)}, {v(bp+4+j)}, {v(bp+6+j)}\nv_add_f32 {v(rec+2+j)}, {v(rec+2+j)}, {v(vS)}")
        for k in range(4):
            a(f"ds_read_b128 {v(vSrc+4*k,4)}, {v(vT)} offset:{OH + 16*k}")
        a(f"v_lshlrev_b32 {v(vB2)}, 16, {v(vB2)}")
        for j in range(2):
            self.round1(rec + 2 + j)
            a(f"v_add_f32 {v(rec+2+j)}, {v(rec+2+j)}, {v(vB2)}")
            self.round1(rec + 2 + j)
        a(f"v_mov_b32 {v(rec)}, {v(vM)}\nv_mov_b32 {v(vP)}, 0xff\nv_mov_b32 {v(vS)}, {s(sTag)}")
        for k in range(4):
            a(f"v_bfi_b32 {v(rec+k)}, {v(vP)}, {v(vS)}, {v(rec+k)}")
        a(f"s_lshl_b32 {s(sMo)}, {s(sR)}, 4\ns_add_u32 {s(sMo)}, {s(sMo)}, {WS_ML}\nv_mov_b32 {v(vT)}, 0")
        a("s_waitcnt vmcnt(0)")
        a(f"s_cmp_lg_u32 {s(sW)}, 0\ns_cbranch_scc1 L_norec\ns_mov_b64 exec, 1")
        a(f"buffer_store_dwordx4 {v(rec,4)}, {v(vT)}, {s(WSSRD,4)}, {s(sMo)} offen sc1")
        a("s_mov_b64 exec, -1\nL_norec:")
        a(f"s_lshl_b32 {s(sYo)}, {s(sR)}, 11\ns_add_u32 {s(sYo)}, {s(sYo)}, {s(sT0)}\ns_add_u32 {s(sYo)}, {s(sYo)}, {WS_Y}")
        a("s_waitcnt lgkmcnt(0)")
        self.stamp()
        a(f"s_call_b64 {s(LINK,2)}, L_gemv")
        for k in range(4):
            a(f"v_mov_b32 {v(vTmp+k)}, {v(vG+k)}")
        for k in range(4):
            a(f"v_permlane32_swap_b32 {v(vG+k)}, {v(vTmp+k)}")
        for k in range(4):
            a(f"v_add_f32 {v(vG+k)}, {v(vG+k)}, {v(vTmp+k)}")
        for k in range(4):
            a(f"v_bfi_b32 {v(vG+k)}, {v(vP)}, {v(vS)}, {v(vG+k)}")
        a("s_mov_b32 exec_hi, 0")
        a(f"buffer_store_dwordx4 {v(vG,4)}, {v(vAD)}, {s(WSSRD,4)}, {s(sYo)} offen sc1")
        a("s_mov_b32 exec_hi, -1")
        self.stamp()
        a("s_cmp_ge_u32 s2, 32\ns_cbranch_scc1 L_fin")

        Y, ML2 = vRing, vRing + 16
        vYo, vMo, vBa, vRa, acc = vRing + 24, vRing + 25, vRing + 26, vRing + 28, vRing + 32
        e, lsum, bad = vRing + 40, vRing + 42, vRing + 44
        acc2 = vSrc
        a(f"v_lshrrev_b32 {v(vT)}, 1, {v(vLane)}\nv_lshlrev_b32 {v(vMo)}, 4, {v(vT)}\nv_lshlrev_b32 {v(vYo)}, 11, {v(vT)}")
        a(f"v_and_b32 {v(vU)}, 1, {v(vLane)}\nv_lshlrev_b32 {v(vU)}, 5, {v(vU)}\nv_add_u32 {v(vYo)}, {v(vYo)}, {v(vU)}")
        a(f"s_lshl_b32 {s(sYo)}, {s(sW)}, 17\ns_lshl_b32 {s(sT0)}, s2, 6\ns_add_u32 {s(sYo)}, {s(sYo)}, {s(sT0)}\ns_add_u32 {s(sYo)}, {s(sYo)}, {WS_Y}\ns_add_u32 {s(sYo2)}, {s(sYo)}, 65536")
        a(f"s_lshl_b32 {s(sMo)}, {s(sW)}, 10\ns_add_u32 {s(sMo)}, {s(sMo)}, {WS_ML}")
        a(f"v_and_b32 {v(vXc)}, 15, {v(vLane)}\nv_lshlrev_b32 {v(vXc)}, 1, {v(vXc)}\ns_lshl_b32 {s(sT0)}, s2, 5")
        a(f"buffer_load_ushort {v(vH0)}, {v(vXc)}, {s(XSRD,4)}, {s(sT0)} offen")
        a(f"v_lshrrev_b32 {v(vP)}, 4, {v(vLane)}\ns_lshl_b32 {s(sT0)}, {s(sW)}, 8\nv_lshl_add_u32 {v(vRa)}, {v(vP)}, 6, {v(vU)}\nv_add_u32 {v(vRa)}, {s(sT0)}, {v(vRa)}")
        a(f"v_and_b32 {v(vT)}, 7, {v(vT)}\nv_lshlrev_b32 {v(vT)}, 3, {v(vT)}\nv_add_u32 {v(vU)}, {DUM - BB}, {v(vT)}")
        a(f"s_lshl_b32 {s(sT0)}, {s(sW)}, 3\ns_sub_u32 {s(sT0)}, s2, {s(sT0)}")
        for i in range(2):
            a(f"v_cmp_eq_u32 vcc, {s(sT0)}, {v(vP)}\nv_cndmask_b32 {v(vBa+i)}, {v(vU)}, {v(vT)}, vcc")
            if i == 0:
                a(f"s_sub_u32 {s(sT0)}, {s(sT0)}, 4")
        a(f"s_mov_b32 {s(sCnt)}, {c['spin']}")
        a("L_poll:")
        for i, so in enumerate((sYo, sYo2)):
            a(f"buffer_load_dwordx4 {v(ML2+4*i,4)}, {v(vMo)}, {s(WSSRD,4)}, {s(sMo)} offen offset:{512*i} sc1")
            for hf in range(2):
                a(f"buffer_load_dwordx4 {v(Y+8*i+4*hf,4)}, {v(vYo)}, {s(WSSRD,4)}, {s(so)} offen offset:{16*hf} sc1")
        a("s_waitcnt vmcnt(0)\ns_mov_b64 exec, -1")
        a(f"v_xor_b32 {v(bad)}, {v(vS)}, {v(Y)}")
        for k in range(1, 24):
            a(f"v_bitop3_b32 {v(bad)}, {v(bad)}, {v(Y+k)}, {v(vS)} bitop3:0xf6")
        a(f"v_and_b32 {v(bad)}, 0xff, {v(bad)}\nv_cmp_ne_u32 {s(sInv,2)}, 0, {v(bad)}")
        for k in list(range(16)) + [17, 21]:
            a(f"v_and_b32 {v(acc2+k)}, 0xffffff00, {v(Y+k)}")
        for i in range(2):
            a(f"v_and_b32 {v(e+i)}, {s(sHiM)}, {v(ML2+4*i)}")
        for i in range(2):
            a(f"v_mul_f32 {v(e+i)}, {s(sLog2e)}, {v(e+i)}")
        for i in range(2):
            a(f"v_max_f32_dpp {v(lsum+i)}, {v(e+i)}, {v(e+i)} row_ror:8 row_mask:0xf bank_mask:0xf")
        for ror in (4, 2):
            for i in range(2):
                a(f"v_max_f32_dpp {v(lsum+i)}, {v(lsum+i)}, {v(lsum+i)} row_ror:{ror} row_mask:0xf bank_mask:0xf")
        for i in range(2):
            a(f"v_sub_f32 {v(e+i)}, {v(e+i)}, {v(lsum+i)}")
        for i in range(2):
            a(f"v_exp_f32 {v(e+i)}, {v(e+i)}")
        for i in range(2):
            a(f"ds_write_b64 {v(vBa+i)}, {v(ML2+4*i+2,2)} offset:{BB}")
        for i in range(2):
            a(f"v_mul_f32 {v(lsum+i)}, {v(e+i)}, {v(acc2+17+4*i)}")
        for ror in (8, 4, 2):
            for i in range(2):
                a(f"v_add_f32_dpp {v(lsum+i)}, {v(lsum+i)}, {v(lsum+i)} row_ror:{ror} row_mask:0xf bank_mask:0xf")
        for i in range(2):
            a(f"v_rcp_f32 {v(lsum+i)}, {v(lsum+i)}")
        for i in range(2):
            a(f"v_mul_f32 {v(e+i)}, {v(e+i)}, {v(lsum+i)}")
        for k in range(8):
            a(f"v_mul_f32 {v(acc+k)}, {v(e)}, {v(acc2+k)}")
        for k in range(8):
            a(f"v_fmac_f32 {v(acc+k)}, {v(e+1)}, {v(acc2+8+k)}")
        for ror in (8, 4, 2):
            for k in range(8):
                a(f"v_add_f32_dpp {v(acc+k)}, {v(acc+k)}, {v(acc+k)} row_ror:{ror} row_mask:0xf bank_mask:0xf")
        a(f"ds_write_b128 {v(vRa)}, {v(acc,4)} offset:{RED}\nds_write_b128 {v(vRa)}, {v(acc+4,4)} offset:{RED+16}")
        a(f"s_sub_u32 {s(sCnt)}, {s(sCnt)}, 1\ns_cmp_eq_u32 {s(sCnt)}, 0\ns_cbranch_scc1 L_polled")
        a(f"s_mov_b64 exec, {s(sInv,2)}\ns_cbranch_execnz L_poll")
        a("L_polled:\ns_mov_b64 exec, -1")
        a(f"v_lshlrev_b32 {v(vT)}, 2, {v(vLane)}\nv_lshlrev_b32 {v(vU)}, 1, {v(vXc)}")
        a("s_waitcnt lgkmcnt(0)\ns_barrier")
        a(f"s_cmp_lg_u32 {s(sW)}, 0\ns_cbranch_scc1 L_fin")
        a(f"ds_read2st64_b32 {v(Y,2)}, {v(vT)} offset0:{RED//256} offset1:{RED//256+1}")
        a(f"ds_read2st64_b32 {v(Y+2,2)}, {v(vT)} offset0:{RED//256+2} offset1:{RED//256+3}")
        a(f"ds_read_b32 {v(Y+4)}, {v(vU)} offset:{BB}")
        a(f"v_lshlrev_b32 {v(vH0)}, 16, {v(vH0)}\ns_lshl_b32 {s(sT0)}, s2, 5")
        a("s_waitcnt lgkmcnt(0)")
        a(f"v_add_f32 {v(Y)}, {v(Y)}, {v(Y+1)}\nv_add_f32 {v(Y+2)}, {v(Y+2)}, {v(Y+3)}\nv_add_f32 {v(Y)}, {v(Y)}, {v(Y+2)}")
        self.rowreduce([Y], vT)
        self.round1(Y)
        a(f"v_add_f32 {v(Y)}, {v(vH0)}, {v(Y)}\nv_and_b32 {v(Y+4)}, {s(sHiM)}, {v(Y+4)}")
        self.round1(Y)
        a(f"v_add_f32 {v(Y)}, {v(Y)}, {v(Y+4)}\nv_cvt_pk_bf16_f32 {v(Y)}, {v(Y)}, {v(Y)}")
        a("s_mov_b64 exec, 0xffff")
        a(f"buffer_store_short {v(Y)}, {v(vXc)}, {s(OUTSRD,4)}, {s(sT0)} offen")
        a("s_cmp_lg_u32 s2, 0\ns_cbranch_scc1 L_fin0\ns_mov_b64 exec, 1")
        a(f"buffer_store_dword {v(vS)}, {v(vXc)}, {s(WSSRD,4)}, 0 offen")
        a("L_fin0:\ns_mov_b64 exec, -1")
        a("L_fin:")
        if c["diag"]:
            self.stamp()
            a(f"s_mov_b32 m0, 0\nv_writelane_b32 {v(vStamp)}, s72, m0")
            a(f"s_getreg_b32 {s(sT0)}, hwreg(HW_REG_XCC_ID)\ns_mov_b32 m0, 63\nv_writelane_b32 {v(vStamp)}, {s(sT0)}, m0")
            a(f"s_mov_b32 m0, 62\nv_writelane_b32 {v(vStamp)}, {s(sStampN)}, m0")
            a(f"s_lshl_b32 {s(sT0)}, s2, 10\ns_add_u32 {s(sT0)}, {s(sT0)}, {WS_DIAG}\nv_lshlrev_b32 {v(vT)}, 2, {v(vTid)}")
            a(f"buffer_store_dword {v(vStamp)}, {v(vT)}, {s(WSSRD,4)}, {s(sT0)} offen")
        a("L_done:\ns_endpgm")

        a("L_gemv:")
        prev = None
        for t in range(32):
            sel = vSel1 if t & 1 else vSel0
            A = vA if t & 1 else vO
            for k in range(4):
                a(f"v_perm_b32 {v(A+k)}, {v(vSrc+t//2)}, {v(vSrc+t//2)}, {v(sel+k)}")
            if gemv_waits[t] != prev:
                a(f"s_waitcnt vmcnt({gemv_waits[t]})")
            a(f"v_mfma_f32_16x16x32_bf16 {v(vG,4)}, {v(A,4)}, a[{4*t}:{4*t+3}], " + ("0" if t == 0 else v(vG, 4)))
        for k in range(4):
            a(f"v_mov_b32 {v(vO+k)}, 0")
        a(f"s_nop 7\ns_setpc_b64 {s(LINK,2)}")

        a("L_rare:\ns_nop 7")
        for k in range(4):
            a(f"v_readlane_b32 {s(sRL+k)}, {v(vS)}, {16*k}")
        for k in range(4):
            a(f"v_max_f32 {v(vM)}, {s(sRL+k)}, {v(vM)}")
        a(f"v_mul_f32 {v(vT)}, {s(sLog2e)}, {v(vM)}\nv_sub_f32 {v(vP)}, {v(vML)}, {v(vT)}\nv_exp_f32 {v(vP)}, {v(vP)}\nv_mov_b32 {v(vML)}, {v(vT)}")
        a(f"v_mul_f32 {v(vL)}, {v(vL)}, {v(vP)}")
        for k in range(4):
            a(f"v_mul_f32 {v(vO+k)}, {v(vO+k)}, {v(vP)}")
        a(f"s_nop 1\ns_setpc_b64 {s(LINK,2)}")
        for lb in self.stubs:
            a(f"L_stub{lb}:\ns_call_b64 {s(LINK,2)}, L_rare\ns_branch L_back{lb}")
        return self.a.finish()

HEADER = open("parallel_sum__mha_block_cached__mixer_token_mlp__decode.s.ref").read().split("; Override launch")[0]

def make(**kw):
    g = Gen(**kw)
    body = g.build()
    nv = vRing + max(8 * g.c["R"], 48)
    acc = (nv + 3) // 4 * 4
    return (HEADER + f"; @launch grid=(256,1,1) block=(256,1,1) lds={LDS_SIZE}\n"
            + '.amdgcn_target "amdgcn-amd-amdhsa--gfx950"\n.text\n'
            + f".globl {NAME}\n.p2align 8\n.type {NAME},@function\n" + body
            + f""".section .rodata,"a"
.p2align 6
.amdhsa_kernel {NAME}
  .amdhsa_next_free_vgpr {acc + 128}
  .amdhsa_next_free_sgpr 102
  .amdhsa_accum_offset {acc}
  .amdhsa_group_segment_fixed_size 0
  .amdhsa_kernarg_size 104
  .amdhsa_user_sgpr_count 2
  .amdhsa_user_sgpr_kernarg_segment_ptr 1
  .amdhsa_system_sgpr_workgroup_id_x 1
  .amdhsa_float_denorm_mode_32 3
.end_amdhsa_kernel
""")

if __name__ == "__main__":
    out = sys.argv[1]
    kw = {}
    for p in sys.argv[2:]:
        k, val = p.split("=", 1)
        try:
            val = int(val)
        except ValueError:
            try:
                val = float(val)
            except ValueError:
                val = val.replace("+", " ")
        kw[k] = val
    open(out, "w").write(make(**kw))
```

```python
import struct, sys, math
from asmlib import Asm

NAME = "parallel_sum__mha_block_cached__mixer_token_mlp__decode_kernel"

def fbits(x):
    return "0x%08x" % struct.unpack("<I", struct.pack("<f", x))[0]

LOG2E = 1.4426950408889634
C2 = -2.0 * math.sqrt(2.0 / math.pi) * LOG2E
C1 = C2 * 0.044715

XN, QP, OP, MLW, BP, OH, RED, BB, DUM, LDS_SIZE = 0, 4096, 6144, 8192, 8256, 8448, 10496, 11520, 11648, 12288
WS_ML, WS_Y, WS_SIZE = 4096, 65536, 65536 + 256 * 2048
WS_DIAG = 1 << 20

vTid, vL16, vWq, vWo = 0, 1, 2, 3
vO, vA, vQ, vMask, vSel0, vSel1 = 4, 8, 12, 16, 20, 24
vM, vML, vL, vS, vT, vP, vU, vAD = 28, 29, 30, 31, 32, 33, 34, 35
vG, vSrc, vX, vW1, vB1, vW2 = 36, 40, 56, 60, 64, 68
vB2, vH0, vH1, vAcc0, vAcc1, vLane, vXc, vStamp = 72, 73, 74, 75, 76, 77, 78, 79
vTmp, vSr, vRing = 80, 96, 112
vBias = vWq
sW, sH, sSp, sR, sKV, sCnt, sTag, sWoff, sLog2e, sT0, sT1 = 3, 50, 51, 52, 53, 54, 55, 56, 57, 58, 59
sInv, sRL, sHiM, sYo, sYo2, sMo, sStampN, sVV = 60, 62, 66, 67, 68, 69, 70, 71
sPh, sAd = 100, 101
KSRD, VSRD, WQSRD, WOSRD, W1SRD, B1SRD, W2SRD, B2SRD, OUTSRD, WSSRD, XSRD = 8, 12, 16, 20, 24, 28, 32, 36, 40, 44, 4
LINK = 48
ARG = 76

def v(i, n=1):
    return f"v{i}" if n == 1 else f"v[{i}:{i+n-1}]"
def s(i, n=1):
    return f"s{i}" if n == 1 else f"s[{i}:{i+n-1}]"

DEFAULT = dict(R0=32, R=16, S=46, FL=6, L=6, alpha=0.4, pre=4, kvper=1.2, post=4, ln_at=4, side_at=8, side_step=2,
               wo_start=24, wo_per=1, flp=99, wflags="nt", kvflags="nt", diag=0, spin=1 << 20, hmap="l", phase="gi")

class Gen:
    def __init__(self, **kw):
        self.c = dict(DEFAULT); self.c.update(kw)
        self.a = Asm()
        self.vm = []
        self.stubs = []
        L = self.c["L"]
        self.order = [("k", i) for i in range(L)]
        for j in range(400):
            self.order += [("k", j + L), ("v", j)]
        self.nxt = {"k": 0, "v": 0}
        self.used = {"k": 0, "v": 0}
        self.nwo = 0

    def vmem(self, text, tag):
        self.a(text); self.vm.append(tag)
    def wait_for(self, tag):
        n = len(self.vm) - 1 - self.vm.index(tag)
        self.a(f"s_waitcnt vmcnt({min(n, 63)})")

    def stamp(self):
        if not self.c["diag"]:
            return
        a = self.a
        a(f"s_memrealtime s[74:75]\ns_waitcnt lgkmcnt(0)\ns_mov_b32 m0, {s(sStampN)}\nv_writelane_b32 {v(vStamp)}, s74, m0\ns_add_u32 {s(sStampN)}, {s(sStampN)}, 1")

    def slot(self, n):
        return n if n < self.c["R0"] else n % self.c["R"]
    def prev_holder(self, n):
        R0, R = self.c["R0"], self.c["R"]
        if n < R0:
            return -1
        return n - R if n - R >= R0 else n % R
    def can(self, t):
        return self.prev_holder(self.nxt[t]) < self.used[t]
    def kreg(self, n):
        return vRing + 4 * self.slot(n)
    def vreg(self, n):
        r = 128 + 4 * self.slot(n)
        return f"a[{r}:{r+3}]"
    def kv_load(self, t):
        assert self.can(t)
        n = self.nxt[t]
        dst = self.vreg(n) if t == "v" else v(self.kreg(n), 4)
        srd, pos = (VSRD, sVV) if t == "v" else (KSRD, sKV)
        self.a(f"s_xor_b32 {s(sAd)}, {s(pos)}, {s(sPh)}")
        self.vmem(f"buffer_load_dwordx4 {dst}, {v(vL16)}, {s(srd,4)}, {s(sAd)} offen {self.c.get(t + 'flags', self.c['kvflags'])}", (t, n))
        self.a(f"s_add_u32 {s(pos)}, {s(pos)}, 4096")
        self.nxt[t] += 1
    def issued(self):
        return self.nxt["k"] + self.nxt["v"]
    def kv_next(self):
        for t, n in self.order:
            if n >= self.nxt[t] and self.can(t):
                self.kv_load(t)
                return True
            if n >= self.nxt[t]:
                break
        return False
    def kv_upto(self, idx, total):
        for t, n in self.order[:idx]:
            if n >= self.nxt[t]:
                self.kv_load(t)
        while self.issued() < total and self.kv_next():
            pass

    def wo_load(self):
        t = self.nwo
        if t % 4 == 0 and t:
            self.a(f"s_add_u32 {s(sWoff)}, {s(sWoff)}, 4096")
        self.vmem(f"buffer_load_dwordx4 a[{4*t}:{4*t+3}], {v(vWo)}, {s(WOSRD,4)}, {s(sWoff)} offen offset:{(t%4)*1024} {self.c['wflags']}", ("wo", t))
        self.nwo += 1

    def allreduce(self, regs, tmp, op="add"):
        a = self.a
        for ror in (8, 4, 2, 1):
            for r in regs:
                a(f"v_{op}_f32_dpp {v(r)}, {v(r)}, {v(r)} row_ror:{ror} row_mask:0xf bank_mask:0xf")
        self.rowreduce(regs, tmp, op)
    def rowreduce(self, regs, tmp, op="add"):
        a = self.a
        for sw in (16, 32):
            for k, r in enumerate(regs):
                a(f"v_mov_b32 {v(tmp+k)}, {v(r)}")
            for k, r in enumerate(regs):
                a(f"v_permlane{sw}_swap_b32 {v(r)}, {v(tmp+k)}")
            for k, r in enumerate(regs):
                a(f"v_{op}_f32 {v(r)}, {v(r)}, {v(tmp+k)}")
    def unpack(self, dlo, dhi, src):
        self.a(f"v_lshlrev_b32 {v(dlo)}, 16, {v(src)}\nv_and_b32 {v(dhi)}, {s(sHiM)}, {v(src)}")
    def round1(self, r):
        self.a(f"v_cvt_pk_bf16_f32 {v(r)}, {v(r)}, {v(r)}\nv_lshlrev_b32 {v(r)}, 16, {v(r)}")

    def ln_sum(self, f, acc, tmp):
        a = self.a
        for k in range(4):
            self.unpack(f + 2*k, f + 2*k + 1, vX + k)
        a(f"v_add_f32 {v(acc)}, {v(f)}, {v(f+1)}\nv_add_f32 {v(tmp)}, {v(f+2)}, {v(f+3)}")
        a(f"v_add_f32 {v(acc)}, {v(acc)}, {v(tmp)}\nv_add_f32 {v(tmp)}, {v(f+4)}, {v(f+5)}")
        a(f"v_add_f32 {v(acc)}, {v(acc)}, {v(tmp)}\nv_add_f32 {v(tmp)}, {v(f+6)}, {v(f+7)}")
        a(f"v_add_f32 {v(acc)}, {v(acc)}, {v(tmp)}")
        self.allreduce([acc], tmp)
        a(f"v_mul_f32 {v(acc)}, {fbits(1/512)}, {v(acc)}")
    def ln_var(self, f, mean, sd, rs, tmp):
        a = self.a
        for k in range(8):
            a(f"v_sub_f32 {v(tmp)}, {v(f+k)}, {v(mean)}")
            a(f"v_mul_f32 {v(sd)}, {v(tmp)}, {v(tmp)}" if k == 0 else f"v_fmac_f32 {v(sd)}, {v(tmp)}, {v(tmp)}")
        self.allreduce([sd], tmp)
        a(f"v_mul_f32 {v(sd)}, {fbits(1/512)}, {v(sd)}")
        self.round1(mean)
        self.round1(sd)
        a(f"v_add_f32 {v(sd)}, {fbits(1e-5)}, {v(sd)}")
        self.round1(sd)
        a(f"v_sqrt_f32 {v(sd)}, {v(sd)}")
        self.round1(sd)
        a(f"v_rcp_f32 {v(rs)}, {v(sd)}")
    def ln_pair(self, dst, f0, f1, mean, sd, rs, t):
        a = self.a
        a(f"v_sub_f32 {v(f0)}, {v(f0)}, {v(mean)}\nv_sub_f32 {v(f1)}, {v(f1)}, {v(mean)}")
        a(f"v_cvt_pk_bf16_f32 {v(t)}, {v(f0)}, {v(f1)}")
        self.unpack(f0, f1, t)
        for f in (f0, f1):
            a(f"v_mul_f32 {v(t)}, {v(f)}, {v(rs)}")
            a(f"v_fma_f32 {v(f)}, -{v(t)}, {v(sd)}, {v(f)}")
            a(f"v_fma_f32 {v(f)}, {v(f)}, {v(rs)}, {v(t)}")
        a(f"v_cvt_pk_bf16_f32 {v(dst)}, {v(f0)}, {v(f1)}")

    def side_blocks(self):
        a = self.a
        f, mean, sd, rs, t = vTmp, vTmp + 8, vTmp + 9, vTmp + 10, vTmp + 11
        def b_sum():
            a(f"s_lshl_b32 {s(sT0)}, {s(sR)}, 2\ns_lshl_b32 {s(sT1)}, {s(sW)}, 10\ns_add_u32 {s(sT0)}, {s(sT0)}, {s(sT1)}")
            a(f"v_mov_b32 {v(vH0)}, {s(sT0)}\nds_read_b32 {v(vH1)}, {v(vH0)} offset:{XN}")
            self.ln_sum(f, mean, t)
        def b_var():
            self.ln_var(f, mean, sd, rs, t)
            a("s_waitcnt lgkmcnt(0)")
            self.unpack(f, f + 1, vH1)
            self.ln_pair(vH1, f, f + 1, mean, sd, rs, t)
            a(f"v_lshlrev_b32 {v(vH0)}, 16, {v(vH1)}\nv_and_b32 {v(vH1)}, {s(sHiM)}, {v(vH1)}")
            a(f"v_mov_b32 {v(vAcc0)}, 0\nv_mov_b32 {v(vAcc1)}, 0")
        def piece(k, col):
            def run():
                wl, wh, bl, bh, u0, u1, t0, t1 = range(vTmp, vTmp + 8)
                if k == 0 and col == 0:
                    self.wait_for("w2")
                if col == 0:
                    self.unpack(wl, wh, vW1 + k)
                    self.unpack(bl, bh, vB1 + k)
                h = vH1 if col else vH0
                acc = vAcc1 if col else vAcc0
                a(f"v_mul_f32 {v(u0)}, {v(h)}, {v(wl)}\nv_mul_f32 {v(u1)}, {v(h)}, {v(wh)}")
                a(f"v_cvt_pk_bf16_f32 {v(t0)}, {v(u0)}, {v(u1)}")
                self.unpack(u0, u1, t0)
                a(f"v_add_f32 {v(u0)}, {v(u0)}, {v(bl)}\nv_add_f32 {v(u1)}, {v(u1)}, {v(bh)}")
                a(f"v_cvt_pk_bf16_f32 {v(t0)}, {v(u0)}, {v(u1)}")
                self.unpack(u0, u1, t0)
                a(f"v_mul_f32 {v(t0)}, {v(u0)}, {v(u0)}\nv_mul_f32 {v(t1)}, {v(u1)}, {v(u1)}")
                a(f"v_mov_b32 {v(vTmp+8)}, {fbits(C1)}")
                a(f"v_fmaak_f32 {v(t0)}, {v(t0)}, {v(vTmp+8)}, {fbits(C2)}\nv_fmaak_f32 {v(t1)}, {v(t1)}, {v(vTmp+8)}, {fbits(C2)}")
                a(f"v_mul_f32 {v(t0)}, {v(t0)}, {v(u0)}\nv_mul_f32 {v(t1)}, {v(t1)}, {v(u1)}")
                a(f"v_exp_f32 {v(t0)}, {v(t0)}\nv_exp_f32 {v(t1)}, {v(t1)}")
                a(f"v_add_f32 {v(t0)}, 1.0, {v(t0)}\nv_add_f32 {v(t1)}, 1.0, {v(t1)}")
                a(f"v_rcp_f32 {v(t0)}, {v(t0)}\nv_rcp_f32 {v(t1)}, {v(t1)}")
                a(f"v_mul_f32 {v(u0)}, {v(u0)}, {v(t0)}\nv_mul_f32 {v(u1)}, {v(u1)}, {v(t1)}")
                a(f"v_cvt_pk_bf16_f32 {v(t0)}, {v(u0)}, {v(u1)}")
                a(f"v_dot2_f32_bf16 {v(acc)}, {v(t0)}, {v(vW2+k)}, {v(acc)}")
            return run
        def b_red():
            self.allreduce([vAcc0, vAcc1], vTmp)
            a(f"s_lshl_b32 {s(sT0)}, {s(sW)}, 3\nv_mov_b32 {v(vTmp)}, {s(sT0)}")
            a(f"v_mov_b32 {v(vTmp+2)}, {v(vAcc0)}\nv_mov_b32 {v(vTmp+3)}, {v(vAcc1)}")
            a(f"ds_write_b64 {v(vTmp)}, {v(vTmp+2,2)} offset:{BP}")
        return [b_sum, b_var] + [piece(k, c) for k in range(4) for c in range(2)] + [b_red]

    def hs_issue(self, hs):
        c = self.c
        self.kv_upto(hs + 1 + c["FL"], self.pro_total + int((hs + 1) * c["alpha"]))
    def step(self, m, n, label, bias=False):
        a = self.a
        K = self.kreg(m); S = vSr + m % 16
        dot = lambda k: a(f"v_dot2_f32_bf16 {v(vS)}, {v(K+k)}, {v(vQ+k)}, " + ("0" if k == 0 else v(vS)))
        dpp = lambda r: a(f"v_add_f32_dpp {v(vS)}, {v(vS)}, {v(vS)} row_ror:{r} row_mask:0xf bank_mask:0xf")
        msk = lambda k: a(f"v_and_b32 {v(vA+k)}, {v(vT)}, {v(vMask+k)}")
        pv = n is not None
        self.wait_for(("k", m))
        self.hs_issue(self.order.index(("k", m)))
        dot(0)
        if pv: a(f"v_fma_f32 {v(vT)}, {v(vSr + n % 16)}, {s(sLog2e)}, -{v(vML)}")
        dot(1)
        if pv: a(f"v_exp_f32 {v(vP)}, {v(vT)}")
        dot(2); dot(3)
        self.used["k"] = m + 1
        if pv:
            a(f"v_cvt_pk_bf16_f32 {v(vT)}, {v(vP)}, {v(vP)}\nv_add_f32 {v(vL)}, {v(vL)}, {v(vP)}")
            msk(0)
        dpp(8)
        if pv: msk(1); msk(2)
        dpp(4)
        if pv:
            msk(3)
            self.wait_for(("v", n))
        dpp(2)
        if pv: self.hs_issue(self.order.index(("v", n)))
        dpp(1)
        if pv:
            a(f"v_mfma_f32_16x16x32_bf16 {v(vO,4)}, {v(vA,4)}, {self.vreg(n)}, {v(vO,4)}")
            self.used["v"] = n + 1
        self.round1(vS)
        if bias:
            a(f"v_fmamk_f32 {v(vS)}, {v(vS)}, {fbits(128 ** -0.5)}, {v(vBias)}")
        else:
            a(f"v_mul_f32 {v(vS)}, {fbits(128 ** -0.5)}, {v(vS)}")
        a(f"v_cvt_pk_bf16_f32 {v(vS)}, {v(vS)}, {v(vS)}\nv_lshlrev_b32 {v(S)}, 16, {v(vS)}")
        a(f"v_cmp_gt_f32 vcc, {v(S)}, {v(vM)}")
        a(f"s_cbranch_vccnz L_stub{label}\nL_back{label}:")
        self.stubs.append(label)

    def srd(self, q, size):
        self.a(f"s_mov_b32 {s(q+2)}, {size}\ns_mov_b32 {s(q+3)}, 0x20000")

    def build(self):
        a, c = self.a, self.c
        R, S, FL = c["R"], c["S"], c["FL"]
        a(f"{NAME}:")
        a("s_cmp_ge_u32 s2, 256\ns_cbranch_scc1 L_done")
        a(f"s_load_dwordx16 {s(ARG,16)}, s[0:1], 0\ns_load_dwordx8 {s(ARG+16,8)}, s[0:1], 64\ns_load_dwordx2 {s(WSSRD,2)}, s[0:1], 96")
        if c["diag"]:
            a(f"s_memrealtime s[72:73]\ns_mov_b32 {s(sStampN)}, 1\nv_mov_b32 {v(vStamp)}, 0")
        a(f"v_lshrrev_b32 {v(vT)}, 6, {v(vTid)}\nv_and_b32 {v(vLane)}, 63, {v(vTid)}")
        a(f"v_readfirstlane_b32 {s(sW)}, {v(vT)}")
        a(f"v_lshlrev_b32 {v(vL16)}, 4, {v(vLane)}")
        if c["hmap"] == "l":
            a(f"s_and_b32 {s(sH)}, s2, 31\ns_lshr_b32 {s(sSp)}, s2, 5")
        else:
            a(f"s_lshr_b32 {s(sH)}, s2, 3\ns_and_b32 {s(sSp)}, s2, 7")
        a(f"s_lshl_b32 {s(sR)}, {s(sH)}, 3\ns_add_u32 {s(sR)}, {s(sR)}, {s(sSp)}")
        a(f"s_lshl_b32 {s(sT0)}, {s(sR)}, 20\ns_lshl_b32 {s(sKV)}, {s(sW)}, 10\ns_mov_b32 {s(sVV)}, {s(sKV)}")
        if c["phase"] == "gi":
            a(f"s_bfe_u32 {s(sPh)}, s2, 0x30003\ns_lshl_b32 {s(sPh)}, {s(sPh)}, 16")
        else:
            a(f"s_mov_b32 {s(sPh)}, 0")
        self.srd(KSRD, 1 << 20); self.srd(VSRD, 1 << 20); self.srd(WQSRD, 4 << 20); self.srd(XSRD, 1024)
        a(f"v_lshrrev_b32 {v(vU)}, 4, {v(vLane)}\nv_and_b32 {v(vT)}, 0xf0, {v(vL16)}")
        a(f"v_lshl_add_u32 {v(vWq)}, {v(vU)}, 18, {v(vT)}\nv_lshl_add_u32 {v(vWo)}, {v(vU)}, 15, {v(vT)}")
        a(f"s_lshl_b32 {s(sWoff)}, {s(sW)}, 20\ns_lshl_b32 {s(sT1)}, {s(sH)}, 8\ns_add_u32 {s(sWoff)}, {s(sWoff)}, {s(sT1)}")
        a("s_waitcnt lgkmcnt(0)")
        a(f"s_mov_b64 {s(XSRD,2)}, {s(ARG,2)}")
        a(f"s_add_u32 {s(KSRD)}, {s(ARG+2)}, {s(sT0)}\ns_addc_u32 {s(KSRD+1)}, {s(ARG+3)}, 0")
        self.vmem(f"buffer_load_dwordx4 {v(vX,4)}, {v(vL16)}, {s(XSRD,4)}, 0 offen", "x")
        a(f"s_add_u32 {s(VSRD)}, {s(ARG+4)}, {s(sT0)}\ns_addc_u32 {s(VSRD+1)}, {s(ARG+5)}, 0")
        a(f"s_mov_b64 {s(WQSRD,2)}, {s(ARG+6,2)}")
        def small_loads():
            for q, arg, size in ((W1SRD, 12, 3584), (B1SRD, 14, 3584), (W2SRD, 16, 3584), (B2SRD, 18, 2), (WOSRD, 8, 4 << 20), (OUTSRD, 20, 1024)):
                a(f"s_mov_b64 {s(q,2)}, {s(ARG+arg,2)}")
                self.srd(q, size)
            self.srd(WSSRD, (WS_DIAG + 256 * 4 * 256) if c["diag"] else WS_SIZE)
            a(f"v_lshlrev_b32 {v(vT)}, 4, {v(vTid)}\nv_mov_b32 {v(vP)}, 0")
            self.vmem(f"buffer_load_dwordx4 {v(vW1,4)}, {v(vT)}, {s(W1SRD,4)}, 0 offen", "w1")
            self.vmem(f"buffer_load_dwordx4 {v(vB1,4)}, {v(vT)}, {s(B1SRD,4)}, 0 offen", "b1")
            self.vmem(f"buffer_load_ushort {v(vB2)}, {v(vP)}, {s(B2SRD,4)}, 0 offen", "b2")
            self.vmem(f"buffer_load_dwordx4 {v(vW2,4)}, {v(vT)}, {s(W2SRD,4)}, 0 offen", "w2")
        def layernorm():
            a(f"s_mov_b32 {s(sHiM)}, 0xffff0000\ns_mov_b32 {s(sLog2e)}, {fbits(LOG2E)}")
            a(f"v_and_b32 {v(vT)}, 1, {v(vLane)}\nv_lshlrev_b32 {v(vT)}, 4, {v(vT)}\nv_mov_b32 {v(vU)}, 0xffff\nv_lshlrev_b32 {v(vU)}, {v(vT)}, {v(vU)}")
            a(f"v_bfe_u32 {v(vT)}, {v(vLane)}, 1, 2\nv_mov_b32 {v(vP)}, 0x0c0c0c0c\ns_mov_b32 {s(sT0)}, 0x01000100\ns_mov_b32 {s(sT1)}, 0x03020302")
            for k in range(4):
                a(f"v_cmp_eq_u32 vcc, {k}, {v(vT)}\nv_cndmask_b32 {v(vMask+k)}, 0, {v(vU)}, vcc")
            for k in range(4):
                a(f"v_bfi_b32 {v(vSel0+k)}, {v(vMask+k)}, {s(sT0)}, {v(vP)}\nv_bfi_b32 {v(vSel1+k)}, {v(vMask+k)}, {s(sT1)}, {v(vP)}")
            a(f"v_and_b32 {v(vAD)}, 15, {v(vLane)}\nv_lshlrev_b32 {v(vAD)}, 5, {v(vAD)}\nv_and_b32 {v(vT)}, 16, {v(vLane)}\nv_add_u32 {v(vAD)}, {v(vAD)}, {v(vT)}")
            a(f"v_mov_b32 {v(vM)}, 0xff800000\nv_mov_b32 {v(vML)}, 0xff800000\nv_mov_b32 {v(vL)}, 0")
            f, mean, sd, rs, t = vTmp, vTmp + 8, vTmp + 9, vTmp + 10, vTmp + 11
            self.wait_for("x")
            self.stamp()
            self.ln_sum(f, mean, t)
            self.ln_var(f, mean, sd, rs, t)
            for k in range(4):
                self.ln_pair(vX + k, f + 2*k, f + 2*k + 1, mean, sd, rs, t)
            a(f"s_lshl_b32 {s(sT0)}, {s(sW)}, 10\nv_add_u32 {v(vT)}, {s(sT0)}, {v(vL16)}")
            a(f"ds_write_b128 {v(vT)}, {v(vX,4)} offset:{XN}")
            a(f"s_mul_i32 {s(sT0)}, {s(sW)}, 1280\nv_and_b32 {v(vT)}, 0x30, {v(vLane)}\nv_lshlrev_b32 {v(vT)}, 2, {v(vT)}\nv_add_u32 {v(vT)}, {s(sT0)}, {v(vT)}")
            a("s_waitcnt lgkmcnt(0)")
            for k in range(4):
                a(f"ds_read_b128 {v(vSrc+4*k,4)}, {v(vT)} offset:{XN + 16*k}")
        self.pro_total = S
        side = self.side_blocks()
        for _ in range(c["pre"]):
            self.kv_next()
        a(f"s_load_dword {s(sTag)}, {s(WSSRD,2)}, 0")
        small_loads()
        credit = 0.0
        def paced():
            if self.issued() >= c["flp"]:
                self.wait_for(self.order[self.issued() - c["flp"]])
            self.kv_next()
        for t in range(32):
            if t == c["ln_at"]:
                layernorm()
            if t >= c["side_at"] and (t - c["side_at"]) % c["side_step"] == 0 and side:
                side.pop(0)()
            self.vmem(f"buffer_load_dwordx4 a[{4*t}:{4*t+3}], {v(vWq)}, {s(WQSRD,4)}, {s(sWoff)} offen {c['wflags']}", ("wq", t))
            if t < 31:
                a(f"s_add_u32 {s(sWoff)}, {s(sWoff)}, 8192")
            credit += c["kvper"]
            while credit >= 1 and self.issued() < self.pro_total - c["post"]:
                paced(); credit -= 1
        while self.issued() < self.pro_total - c["post"]:
            paced()
        a(f"s_lshl_b32 {s(sWoff)}, {s(sH)}, 17\ns_lshl_b32 {s(sT1)}, {s(sW)}, 8\ns_add_u32 {s(sWoff)}, {s(sWoff)}, {s(sT1)}")
        a("s_waitcnt lgkmcnt(0)")
        self.stamp()
        gemv_waits = [min(63, len(self.vm) - 1 - self.vm.index(("wq", t))) for t in range(32)]
        a(f"s_call_b64 {s(LINK,2)}, L_gemv")
        self.stamp()
        a(f"s_lshl_b32 {s(sT0)}, {s(sW)}, 9\nv_add_u32 {v(vU)}, {s(sT0)}, {v(vAD)}")
        a(f"ds_write_b128 {v(vU)}, {v(vG,4)} offset:{QP}")
        while self.issued() < self.pro_total:
            assert self.kv_next()
        a(f"v_and_b32 {v(vT)}, 0xf0, {v(vL16)}\nv_lshlrev_b32 {v(vT)}, 1, {v(vT)}")
        a("s_waitcnt lgkmcnt(0)\ns_barrier")
        for w in range(4):
            for hf in range(2):
                dst = (vSrc + 8*w + 4*hf) if w < 2 else (vTmp + 8*(w-2) + 4*hf)
                a(f"ds_read_b128 {v(dst,4)}, {v(vT)} offset:{QP + 512*w + 16*hf}")
        a(f"s_add_u32 {s(sTag)}, {s(sTag)}, 1\ns_and_b32 {s(sTag)}, {s(sTag)}, 0xff\nv_mov_b32 {v(vBias)}, 0")
        a("s_waitcnt lgkmcnt(0)")
        for k in range(8):
            a(f"v_add_f32 {v(vSrc+k)}, {v(vSrc+k)}, {v(vSrc+8+k)}\nv_add_f32 {v(vTmp+k)}, {v(vTmp+k)}, {v(vTmp+8+k)}")
        for k in range(8):
            a(f"v_add_f32 {v(vSrc+k)}, {v(vSrc+k)}, {v(vTmp+k)}")
        for k in range(4):
            a(f"v_cvt_pk_bf16_f32 {v(vQ+k)}, {v(vSrc+2*k)}, {v(vSrc+2*k+1)}")
        self.stamp()

        last_special = max(c["R0"], c["wo_start"] + -(-32 // c["wo_per"]))
        L = c["L"]
        for m in range(L):
            self.step(m, None, f"_k{m}")
        n = 0
        while True:
            self.step(n + L, n, f"_p{n}")
            if n >= c["wo_start"]:
                for _ in range(c["wo_per"]):
                    if self.nwo < 32:
                        self.wo_load()
            if side and n >= c["R0"] - len(side):
                side.pop(0)()
            n += 1
            if n % R == 0:
                self.stamp()
                steady = self.order[:L + 2*n + FL]
                if n >= last_special and all(self.nxt[t] == sum(1 for x in steady if x[0] == t) for t in "kv"):
                    break
        assert self.nwo == 32 and not side
        nloop = (256 - n) // R
        a(f"s_mov_b32 {s(sCnt)}, {nloop}")
        self.vm = list(self.order[L + 2*n:L + 2*n + FL])
        self.c["alpha"] = 0
        a("L_loop:")
        a(f"s_cmp_eq_u32 {s(sCnt)}, 1\ns_cselect_b32 {s(sT0)}, 0xff800000, 0\nv_mov_b32 {v(vBias)}, {s(sT0)}")
        for k in range(R):
            self.step(n + k + L, n + k, f"_l{k}", bias=(k + L >= R))
        self.stamp()
        a(f"s_sub_u32 {s(sCnt)}, {s(sCnt)}, 1\ns_cmp_lg_u32 {s(sCnt)}, 0\ns_cbranch_scc1 L_loop")

        self.rowreduce([vL], vT)
        a(f"v_mov_b32 {v(vTmp)}, {v(vM)}\nv_mov_b32 {v(vTmp+1)}, {v(vL)}")
        a(f"s_lshl_b32 {s(sT0)}, {s(sW)}, 3\nv_mov_b32 {v(vT)}, {s(sT0)}")
        a(f"ds_write_b64 {v(vT)}, {v(vTmp,2)} offset:{MLW}")
        a(f"ds_write_b128 {v(vU)}, {v(vO,4)} offset:{OP}")
        a(f"v_lshlrev_b32 {v(vT)}, 3, {v(vLane)}\nv_mov_b32 {v(vP)}, 0")
        a("s_waitcnt lgkmcnt(0)\ns_barrier")
        ml, op, bp = vTmp, vSrc, vSrc + 8
        a(f"ds_read_b128 {v(ml,4)}, {v(vP)} offset:{MLW}\nds_read_b128 {v(ml+4,4)}, {v(vP)} offset:{MLW+16}")
        for w in range(4):
            a(f"ds_read_b64 {v(op+2*w,2)}, {v(vT)} offset:{OP + 512*w}")
        a(f"ds_read_b128 {v(bp,4)}, {v(vP)} offset:{BP}\nds_read_b128 {v(bp+4,4)}, {v(vP)} offset:{BP+16}")
        a(f"s_lshl_b32 {s(sT0)}, {s(sW)}, 9\nv_lshlrev_b32 {v(vT)}, 2, {v(vLane)}\nv_add_u32 {v(vT)}, {s(sT0)}, {v(vT)}")
        a("s_waitcnt lgkmcnt(6)")
        a(f"v_max3_f32 {v(vM)}, {v(ml)}, {v(ml+2)}, {v(ml+4)}\nv_max_f32 {v(vM)}, {v(vM)}, {v(ml+6)}")
        a(f"v_mul_f32 {v(vML)}, {s(sLog2e)}, {v(vM)}")
        for w in range(4):
            a(f"v_mul_f32 {v(ml+2*w)}, {s(sLog2e)}, {v(ml+2*w)}")
        for w in range(4):
            a(f"v_sub_f32 {v(ml+2*w)}, {v(ml+2*w)}, {v(vML)}")
        for w in range(4):
            a(f"v_exp_f32 {v(ml+2*w)}, {v(ml+2*w)}")
        a("s_waitcnt lgkmcnt(2)")
        o0, o1, hi, lo = vTmp + 8, vTmp + 9, vTmp + 10, vTmp + 11
        a(f"v_mul_f32 {v(o0)}, {v(ml)}, {v(op)}\nv_mul_f32 {v(o1)}, {v(ml)}, {v(op+1)}")
        for w in range(1, 4):
            a(f"v_fmac_f32 {v(o0)}, {v(ml+2*w)}, {v(op+2*w)}\nv_fmac_f32 {v(o1)}, {v(ml+2*w)}, {v(op+2*w+1)}")
        a(f"v_cvt_pk_bf16_f32 {v(hi)}, {v(o0)}, {v(o1)}")
        self.unpack(vTmp + 12, vTmp + 13, hi)
        a(f"v_sub_f32 {v(o0)}, {v(o0)}, {v(vTmp+12)}\nv_sub_f32 {v(o1)}, {v(o1)}, {v(vTmp+13)}")
        a(f"v_cvt_pk_bf16_f32 {v(lo)}, {v(o0)}, {v(o1)}")
        a(f"ds_write_b32 {v(vT)}, {v(hi)} offset:{OH}\nds_write_b32 {v(vT)}, {v(lo)} offset:{OH+256}")
        rec = vTmp + 12
        a(f"v_mul_f32 {v(rec+1)}, {v(ml)}, {v(ml+1)}")
        for w in range(1, 4):
            a(f"v_fmac_f32 {v(rec+1)}, {v(ml+2*w)}, {v(ml+2*w+1)}")
        a(f"v_and_b32 {v(vT)}, 8, {v(vLane)}\nv_lshlrev_b32 {v(vT)}, 5, {v(vT)}\nv_and_b32 {v(vS)}, 0x30, {v(vLane)}\nv_lshl_add_u32 {v(vT)}, {v(vS)}, 2, {v(vT)}\nv_add_u32 {v(vT)}, {s(sT0)}, {v(vT)}")
        a("s_waitcnt lgkmcnt(0)")
        for j in range(2):
            a(f"v_add_f32 {v(rec+2+j)}, {v(bp+j)}, {v(bp+2+j)}\nv_add_f32 {v(vS)}, {v(bp+4+j)}, {v(bp+6+j)}\nv_add_f32 {v(rec+2+j)}, {v(rec+2+j)}, {v(vS)}")
        for k in range(4):
            a(f"ds_read_b128 {v(vSrc+4*k,4)}, {v(vT)} offset:{OH + 16*k}")
        a(f"v_lshlrev_b32 {v(vB2)}, 16, {v(vB2)}")
        for j in range(2):
            self.round1(rec + 2 + j)
            a(f"v_add_f32 {v(rec+2+j)}, {v(rec+2+j)}, {v(vB2)}")
            self.round1(rec + 2 + j)
        a(f"v_mov_b32 {v(rec)}, {v(vM)}\nv_mov_b32 {v(vP)}, 0xff\nv_mov_b32 {v(vS)}, {s(sTag)}")
        for k in range(4):
            a(f"v_bfi_b32 {v(rec+k)}, {v(vP)}, {v(vS)}, {v(rec+k)}")
        a(f"s_lshl_b32 {s(sMo)}, {s(sR)}, 4\ns_add_u32 {s(sMo)}, {s(sMo)}, {WS_ML}\nv_mov_b32 {v(vT)}, 0")
        a("s_waitcnt vmcnt(0)")
        a(f"s_cmp_lg_u32 {s(sW)}, 0\ns_cbranch_scc1 L_norec\ns_mov_b64 exec, 1")
        a(f"buffer_store_dwordx4 {v(rec,4)}, {v(vT)}, {s(WSSRD,4)}, {s(sMo)} offen sc1")
        a("s_mov_b64 exec, -1\nL_norec:")
        a(f"s_lshl_b32 {s(sYo)}, {s(sR)}, 11\ns_add_u32 {s(sYo)}, {s(sYo)}, {s(sT0)}\ns_add_u32 {s(sYo)}, {s(sYo)}, {WS_Y}")
        a("s_waitcnt lgkmcnt(0)")
        self.stamp()
        a(f"s_call_b64 {s(LINK,2)}, L_gemv")
        for k in range(4):
            a(f"v_mov_b32 {v(vTmp+k)}, {v(vG+k)}")
        for k in range(4):
            a(f"v_permlane32_swap_b32 {v(vG+k)}, {v(vTmp+k)}")
        for k in range(4):
            a(f"v_add_f32 {v(vG+k)}, {v(vG+k)}, {v(vTmp+k)}")
        for k in range(4):
            a(f"v_bfi_b32 {v(vG+k)}, {v(vP)}, {v(vS)}, {v(vG+k)}")
        a("s_mov_b32 exec_hi, 0")
        a(f"buffer_store_dwordx4 {v(vG,4)}, {v(vAD)}, {s(WSSRD,4)}, {s(sYo)} offen sc1")
        a("s_mov_b32 exec_hi, -1")
        self.stamp()
        a("s_cmp_ge_u32 s2, 32\ns_cbranch_scc1 L_fin")

        Y, ML2 = vRing, vRing + 16
        vYo, vMo, vBa, vRa, acc = vRing + 24, vRing + 25, vRing + 26, vRing + 28, vRing + 32
        e, lsum, bad = vRing + 40, vRing + 42, vRing + 44
        acc2 = vSrc
        a(f"v_lshrrev_b32 {v(vT)}, 1, {v(vLane)}\nv_lshlrev_b32 {v(vMo)}, 4, {v(vT)}\nv_lshlrev_b32 {v(vYo)}, 11, {v(vT)}")
        a(f"v_and_b32 {v(vU)}, 1, {v(vLane)}\nv_lshlrev_b32 {v(vU)}, 5, {v(vU)}\nv_add_u32 {v(vYo)}, {v(vYo)}, {v(vU)}")
        a(f"s_lshl_b32 {s(sYo)}, {s(sW)}, 17\ns_lshl_b32 {s(sT0)}, s2, 6\ns_add_u32 {s(sYo)}, {s(sYo)}, {s(sT0)}\ns_add_u32 {s(sYo)}, {s(sYo)}, {WS_Y}\ns_add_u32 {s(sYo2)}, {s(sYo)}, 65536")
        a(f"s_lshl_b32 {s(sMo)}, {s(sW)}, 10\ns_add_u32 {s(sMo)}, {s(sMo)}, {WS_ML}")
        a(f"v_and_b32 {v(vXc)}, 15, {v(vLane)}\nv_lshlrev_b32 {v(vXc)}, 1, {v(vXc)}\ns_lshl_b32 {s(sT0)}, s2, 5")
        a(f"buffer_load_ushort {v(vH0)}, {v(vXc)}, {s(XSRD,4)}, {s(sT0)} offen")
        a(f"v_lshrrev_b32 {v(vP)}, 4, {v(vLane)}\ns_lshl_b32 {s(sT0)}, {s(sW)}, 8\nv_lshl_add_u32 {v(vRa)}, {v(vP)}, 6, {v(vU)}\nv_add_u32 {v(vRa)}, {s(sT0)}, {v(vRa)}")
        a(f"v_and_b32 {v(vT)}, 7, {v(vT)}\nv_lshlrev_b32 {v(vT)}, 3, {v(vT)}\nv_add_u32 {v(vU)}, {DUM - BB}, {v(vT)}")
        a(f"s_lshl_b32 {s(sT0)}, {s(sW)}, 3\ns_sub_u32 {s(sT0)}, s2, {s(sT0)}")
        for i in range(2):
            a(f"v_cmp_eq_u32 vcc, {s(sT0)}, {v(vP)}\nv_cndmask_b32 {v(vBa+i)}, {v(vU)}, {v(vT)}, vcc")
            if i == 0:
                a(f"s_sub_u32 {s(sT0)}, {s(sT0)}, 4")
        a(f"s_mov_b32 {s(sCnt)}, {c['spin']}")
        a("L_poll:")
        for i, so in enumerate((sYo, sYo2)):
            a(f"buffer_load_dwordx4 {v(ML2+4*i,4)}, {v(vMo)}, {s(WSSRD,4)}, {s(sMo)} offen offset:{512*i} sc1")
            for hf in range(2):
                a(f"buffer_load_dwordx4 {v(Y+8*i+4*hf,4)}, {v(vYo)}, {s(WSSRD,4)}, {s(so)} offen offset:{16*hf} sc1")
        a("s_waitcnt vmcnt(0)\ns_mov_b64 exec, -1")
        a(f"v_xor_b32 {v(bad)}, {v(vS)}, {v(Y)}")
        for k in range(1, 24):
            a(f"v_bitop3_b32 {v(bad)}, {v(bad)}, {v(Y+k)}, {v(vS)} bitop3:0xf6")
        a(f"v_and_b32 {v(bad)}, 0xff, {v(bad)}\nv_cmp_ne_u32 {s(sInv,2)}, 0, {v(bad)}")
        for k in list(range(16)) + [17, 21]:
            a(f"v_and_b32 {v(acc2+k)}, 0xffffff00, {v(Y+k)}")
        for i in range(2):
            a(f"v_and_b32 {v(e+i)}, {s(sHiM)}, {v(ML2+4*i)}")
        for i in range(2):
            a(f"v_mul_f32 {v(e+i)}, {s(sLog2e)}, {v(e+i)}")
        for i in range(2):
            a(f"v_max_f32_dpp {v(lsum+i)}, {v(e+i)}, {v(e+i)} row_ror:8 row_mask:0xf bank_mask:0xf")
        for ror in (4, 2):
            for i in range(2):
                a(f"v_max_f32_dpp {v(lsum+i)}, {v(lsum+i)}, {v(lsum+i)} row_ror:{ror} row_mask:0xf bank_mask:0xf")
        for i in range(2):
            a(f"v_sub_f32 {v(e+i)}, {v(e+i)}, {v(lsum+i)}")
        for i in range(2):
            a(f"v_exp_f32 {v(e+i)}, {v(e+i)}")
        for i in range(2):
            a(f"ds_write_b64 {v(vBa+i)}, {v(ML2+4*i+2,2)} offset:{BB}")
        for i in range(2):
            a(f"v_mul_f32 {v(lsum+i)}, {v(e+i)}, {v(acc2+17+4*i)}")
        for ror in (8, 4, 2):
            for i in range(2):
                a(f"v_add_f32_dpp {v(lsum+i)}, {v(lsum+i)}, {v(lsum+i)} row_ror:{ror} row_mask:0xf bank_mask:0xf")
        for i in range(2):
            a(f"v_rcp_f32 {v(lsum+i)}, {v(lsum+i)}")
        for i in range(2):
            a(f"v_mul_f32 {v(e+i)}, {v(e+i)}, {v(lsum+i)}")
        for k in range(8):
            a(f"v_mul_f32 {v(acc+k)}, {v(e)}, {v(acc2+k)}")
        for k in range(8):
            a(f"v_fmac_f32 {v(acc+k)}, {v(e+1)}, {v(acc2+8+k)}")
        for ror in (8, 4, 2):
            for k in range(8):
                a(f"v_add_f32_dpp {v(acc+k)}, {v(acc+k)}, {v(acc+k)} row_ror:{ror} row_mask:0xf bank_mask:0xf")
        a(f"ds_write_b128 {v(vRa)}, {v(acc,4)} offset:{RED}\nds_write_b128 {v(vRa)}, {v(acc+4,4)} offset:{RED+16}")
        a(f"s_sub_u32 {s(sCnt)}, {s(sCnt)}, 1\ns_cmp_eq_u32 {s(sCnt)}, 0\ns_cbranch_scc1 L_polled")
        a(f"s_mov_b64 exec, {s(sInv,2)}\ns_cbranch_execnz L_poll")
        a("L_polled:\ns_mov_b64 exec, -1")
        a(f"v_lshlrev_b32 {v(vT)}, 2, {v(vLane)}\nv_lshlrev_b32 {v(vU)}, 1, {v(vXc)}")
        a("s_waitcnt lgkmcnt(0)\ns_barrier")
        a(f"s_cmp_lg_u32 {s(sW)}, 0\ns_cbranch_scc1 L_fin")
        a(f"ds_read2st64_b32 {v(Y,2)}, {v(vT)} offset0:{RED//256} offset1:{RED//256+1}")
        a(f"ds_read2st64_b32 {v(Y+2,2)}, {v(vT)} offset0:{RED//256+2} offset1:{RED//256+3}")
        a(f"ds_read_b32 {v(Y+4)}, {v(vU)} offset:{BB}")
        a(f"v_lshlrev_b32 {v(vH0)}, 16, {v(vH0)}\ns_lshl_b32 {s(sT0)}, s2, 5")
        a("s_waitcnt lgkmcnt(0)")
        a(f"v_add_f32 {v(Y)}, {v(Y)}, {v(Y+1)}\nv_add_f32 {v(Y+2)}, {v(Y+2)}, {v(Y+3)}\nv_add_f32 {v(Y)}, {v(Y)}, {v(Y+2)}")
        self.rowreduce([Y], vT)
        self.round1(Y)
        a(f"v_add_f32 {v(Y)}, {v(vH0)}, {v(Y)}\nv_and_b32 {v(Y+4)}, {s(sHiM)}, {v(Y+4)}")
        self.round1(Y)
        a(f"v_add_f32 {v(Y)}, {v(Y)}, {v(Y+4)}\nv_cvt_pk_bf16_f32 {v(Y)}, {v(Y)}, {v(Y)}")
        a("s_mov_b64 exec, 0xffff")
        a(f"buffer_store_short {v(Y)}, {v(vXc)}, {s(OUTSRD,4)}, {s(sT0)} offen")
        a("s_cmp_lg_u32 s2, 0\ns_cbranch_scc1 L_fin0\ns_mov_b64 exec, 1")
        a(f"buffer_store_dword {v(vS)}, {v(vXc)}, {s(WSSRD,4)}, 0 offen")
        a("L_fin0:\ns_mov_b64 exec, -1")
        a("L_fin:")
        if c["diag"]:
            self.stamp()
            a(f"s_mov_b32 m0, 0\nv_writelane_b32 {v(vStamp)}, s72, m0")
            a(f"s_getreg_b32 {s(sT0)}, hwreg(HW_REG_XCC_ID)\ns_mov_b32 m0, 63\nv_writelane_b32 {v(vStamp)}, {s(sT0)}, m0")
            a(f"s_mov_b32 m0, 62\nv_writelane_b32 {v(vStamp)}, {s(sStampN)}, m0")
            a(f"s_lshl_b32 {s(sT0)}, s2, 10\ns_add_u32 {s(sT0)}, {s(sT0)}, {WS_DIAG}\nv_lshlrev_b32 {v(vT)}, 2, {v(vTid)}")
            a(f"buffer_store_dword {v(vStamp)}, {v(vT)}, {s(WSSRD,4)}, {s(sT0)} offen")
        a("L_done:\ns_endpgm")

        a("L_gemv:")
        prev = None
        for t in range(32):
            sel = vSel1 if t & 1 else vSel0
            A = vA if t & 1 else vO
            for k in range(4):
                a(f"v_perm_b32 {v(A+k)}, {v(vSrc+t//2)}, {v(vSrc+t//2)}, {v(sel+k)}")
            if gemv_waits[t] != prev:
                a(f"s_waitcnt vmcnt({gemv_waits[t]})")
            a(f"v_mfma_f32_16x16x32_bf16 {v(vG,4)}, {v(A,4)}, a[{4*t}:{4*t+3}], " + ("0" if t == 0 else v(vG, 4)))
        for k in range(4):
            a(f"v_mov_b32 {v(vO+k)}, 0")
        a(f"s_nop 7\ns_setpc_b64 {s(LINK,2)}")

        a("L_rare:\ns_nop 7")
        for k in range(4):
            a(f"v_readlane_b32 {s(sRL+k)}, {v(vS)}, {16*k}")
        for k in range(4):
            a(f"s_lshl_b32 {s(sRL+k)}, {s(sRL+k)}, 16")
        for k in range(4):
            a(f"v_max_f32 {v(vM)}, {s(sRL+k)}, {v(vM)}")
        a(f"v_mul_f32 {v(vT)}, {s(sLog2e)}, {v(vM)}\nv_sub_f32 {v(vP)}, {v(vML)}, {v(vT)}\nv_exp_f32 {v(vP)}, {v(vP)}\nv_mov_b32 {v(vML)}, {v(vT)}")
        a(f"v_mul_f32 {v(vL)}, {v(vL)}, {v(vP)}")
        for k in range(4):
            a(f"v_mul_f32 {v(vO+k)}, {v(vO+k)}, {v(vP)}")
        a(f"s_nop 1\ns_setpc_b64 {s(LINK,2)}")
        for lb in self.stubs:
            a(f"L_stub{lb}:\ns_call_b64 {s(LINK,2)}, L_rare\ns_branch L_back{lb}")
        return self.a.finish()

HEADER = open("parallel_sum__mha_block_cached__mixer_token_mlp__decode.s.ref").read().split("; Override launch")[0]

def make(**kw):
    g = Gen(**kw)
    body = g.build()
    nv = vRing + max(4 * g.c["R0"], 48)
    acc = (nv + 3) // 4 * 4
    return (HEADER + f"; @launch grid=(256,1,1) block=(256,1,1) lds={LDS_SIZE}\n"
            + '.amdgcn_target "amdgcn-amd-amdhsa--gfx950"\n.text\n'
            + f".globl {NAME}\n.p2align 8\n.type {NAME},@function\n" + body
            + f""".section .rodata,"a"
.p2align 6
.amdhsa_kernel {NAME}
  .amdhsa_next_free_vgpr {acc + 128 + 4 * g.c['R0']}
  .amdhsa_next_free_sgpr 102
  .amdhsa_accum_offset {acc}
  .amdhsa_group_segment_fixed_size 0
  .amdhsa_kernarg_size 104
  .amdhsa_user_sgpr_count 2
  .amdhsa_user_sgpr_kernarg_segment_ptr 1
  .amdhsa_system_sgpr_workgroup_id_x 1
  .amdhsa_float_denorm_mode_32 3
.end_amdhsa_kernel
""")

if __name__ == "__main__":
    out = sys.argv[1]
    kw = {}
    for p in sys.argv[2:]:
        k, val = p.split("=", 1)
        try:
            val = int(val)
        except ValueError:
            try:
                val = float(val)
            except ValueError:
                val = val.replace("+", " ")
        kw[k] = val
    open(out, "w").write(make(**kw))
```

```python
import struct, sys, math
from asmlib import Asm

NAME = "parallel_sum__mha_block_cached__mixer_token_mlp__decode_kernel"

def fbits(x):
    return "0x%08x" % struct.unpack("<I", struct.pack("<f", x))[0]

LOG2E = 1.4426950408889634
C2 = -2.0 * math.sqrt(2.0 / math.pi) * LOG2E
C1 = C2 * 0.044715

XN, QP, OP, MLW, BP, OH, RED, BB, DUM, SC = 0, 4096, 6144, 8192, 8256, 8448, 10496, 11520, 11648, 12288
LDS_SIZE = SC + 4 * 16384 + 1024
WS_ML, WS_Y, WS_SIZE = 4096, 65536, 65536 + 256 * 2048
WS_DIAG = 1 << 20

vTid, vL16, vWq, vWo = 0, 1, 2, 3
vO, vA, vQ, vMask, vSel0, vSel1 = 4, 8, 12, 16, 20, 24
vM, vML, vL, vS, vT, vP, vU, vAD = 28, 29, 30, 31, 32, 33, 34, 35
vG, vSrc, vX, vW1, vB1, vW2 = 36, 40, 56, 60, 64, 68
vB2, vH0, vH1, vAcc0, vAcc1, vLane, vXc, vStamp = 72, 73, 74, 75, 76, 77, 78, 79
vTmp, vRing = 80, 96
vS2, vPk, vPf, vPp, vSc, vLa = vSrc, vSrc + 2, vSrc + 4, vSrc + 6, vSrc + 8, vSrc + 12
sW, sH, sSp, sR, sKV, sCnt, sTag, sWoff, sLog2e, sT0, sT1 = 3, 50, 51, 52, 53, 54, 55, 56, 57, 58, 59
sInv, sRL, sHiM, sYo, sYo2, sMo, sStampN, sVV = 60, 62, 66, 67, 68, 69, 70, 71
sPh, sAd = 100, 101
KSRD, VSRD, WQSRD, WOSRD, W1SRD, B1SRD, W2SRD, B2SRD, OUTSRD, WSSRD, XSRD = 8, 12, 16, 20, 24, 28, 32, 36, 40, 44, 4
LINK = 48
ARG = 76

def v(i, n=1):
    return f"v{i}" if n == 1 else f"v[{i}:{i+n-1}]"
def s(i, n=1):
    return f"s{i}" if n == 1 else f"s[{i}:{i+n-1}]"

DEFAULT = dict(R0=40, S=40, FL=6, alpha=0.25, pre=6, kvper=0.9, post=6, flp=6, ln_at=4, side_at=8, side_step=2,
               wo_start=32, wo_every=2, wflags="nt", kvflags="nt", diag=0, spin=1 << 20, hmap="l", phase="gi")
R = 16

class Gen:
    def __init__(self, **kw):
        self.c = dict(DEFAULT); self.c.update(kw)
        self.a = Asm()
        self.vm = []
        self.stubs = []
        self.nxt = 0
        self.used = 0
        self.nwo = 0

    def vmem(self, text, tag):
        self.a(text); self.vm.append(tag)
    def wait_for(self, tag):
        n = len(self.vm) - 1 - self.vm.index(tag)
        self.a(f"s_waitcnt vmcnt({min(n, 63)})")

    def stamp(self):
        if not self.c["diag"]:
            return
        a = self.a
        a(f"s_memrealtime s[74:75]\ns_waitcnt lgkmcnt(0)\ns_mov_b32 m0, {s(sStampN)}\nv_writelane_b32 {v(vStamp)}, s74, m0\ns_add_u32 {s(sStampN)}, {s(sStampN)}, 1")

    def slot(self, n):
        return vRing + 4 * (n if n < self.c["R0"] else n % R)
    def can(self):
        n, R0 = self.nxt, self.c["R0"]
        prev = -1 if n < R0 else (n - R if n - R >= R0 else n % R)
        return prev < self.used
    def kv_load(self, late_add=False):
        assert self.can()
        n = self.nxt
        self.a(f"s_xor_b32 {s(sAd)}, {s(sKV)}, {s(sPh)}")
        self.vmem(f"buffer_load_dwordx4 {v(self.slot(n),4)}, {v(vL16)}, {s(KSRD,4)}, {s(sAd)} offen {self.c['kvflags']}", ("kv", n))
        self.nxt += 1
        add = f"s_add_u32 {s(sKV)}, {s(sKV)}, 4096"
        if late_add:
            return add
        self.a(add)
    def issue_at(self, n):
        c = self.c
        want = max(n + 1 + c["FL"], self.pro_total + int((n + 1) * c["alpha"]))
        add = None
        while self.nxt < want and (self.can() or self.nxt < n + 1 + c["FL"]):
            if add:
                self.a(add)
            add = self.kv_load(late_add=True)
        return [add] if add else []

    def wo_load(self):
        t = self.nwo
        if t % 4 == 0 and t:
            self.a(f"s_add_u32 {s(sWoff)}, {s(sWoff)}, 4096")
        self.vmem(f"buffer_load_dwordx4 a[{4*t}:{4*t+3}], {v(vWo)}, {s(WOSRD,4)}, {s(sWoff)} offen offset:{(t%4)*1024} {self.c['wflags']}", ("wo", t))
        self.nwo += 1

    def allreduce(self, regs, tmp, op="add"):
        a = self.a
        for ror in (8, 4, 2, 1):
            for r in regs:
                a(f"v_{op}_f32_dpp {v(r)}, {v(r)}, {v(r)} row_ror:{ror} row_mask:0xf bank_mask:0xf")
        self.rowreduce(regs, tmp, op)
    def rowreduce(self, regs, tmp, op="add"):
        a = self.a
        for sw in (16, 32):
            for k, r in enumerate(regs):
                a(f"v_mov_b32 {v(tmp+k)}, {v(r)}")
            for k, r in enumerate(regs):
                a(f"v_permlane{sw}_swap_b32 {v(r)}, {v(tmp+k)}")
            for k, r in enumerate(regs):
                a(f"v_{op}_f32 {v(r)}, {v(r)}, {v(tmp+k)}")
    def unpack(self, dlo, dhi, src):
        self.a(f"v_lshlrev_b32 {v(dlo)}, 16, {v(src)}\nv_and_b32 {v(dhi)}, {s(sHiM)}, {v(src)}")
    def round1(self, r):
        self.a(f"v_cvt_pk_bf16_f32 {v(r)}, {v(r)}, {v(r)}\nv_lshlrev_b32 {v(r)}, 16, {v(r)}")

    def ln_sum(self, f, acc, tmp):
        a = self.a
        for k in range(4):
            self.unpack(f + 2*k, f + 2*k + 1, vX + k)
        a(f"v_add_f32 {v(acc)}, {v(f)}, {v(f+1)}\nv_add_f32 {v(tmp)}, {v(f+2)}, {v(f+3)}")
        a(f"v_add_f32 {v(acc)}, {v(acc)}, {v(tmp)}\nv_add_f32 {v(tmp)}, {v(f+4)}, {v(f+5)}")
        a(f"v_add_f32 {v(acc)}, {v(acc)}, {v(tmp)}\nv_add_f32 {v(tmp)}, {v(f+6)}, {v(f+7)}")
        a(f"v_add_f32 {v(acc)}, {v(acc)}, {v(tmp)}")
        self.allreduce([acc], tmp)
        a(f"v_mul_f32 {v(acc)}, {fbits(1/512)}, {v(acc)}")
    def ln_var(self, f, mean, sd, rs, tmp):
        a = self.a
        for k in range(8):
            a(f"v_sub_f32 {v(tmp)}, {v(f+k)}, {v(mean)}")
            a(f"v_mul_f32 {v(sd)}, {v(tmp)}, {v(tmp)}" if k == 0 else f"v_fmac_f32 {v(sd)}, {v(tmp)}, {v(tmp)}")
        self.allreduce([sd], tmp)
        a(f"v_mul_f32 {v(sd)}, {fbits(1/512)}, {v(sd)}")
        self.round1(mean)
        self.round1(sd)
        a(f"v_add_f32 {v(sd)}, {fbits(1e-5)}, {v(sd)}")
        self.round1(sd)
        a(f"v_sqrt_f32 {v(sd)}, {v(sd)}")
        self.round1(sd)
        a(f"v_rcp_f32 {v(rs)}, {v(sd)}")
    def ln_pair(self, dst, f0, f1, mean, sd, rs, t):
        a = self.a
        a(f"v_sub_f32 {v(f0)}, {v(f0)}, {v(mean)}\nv_sub_f32 {v(f1)}, {v(f1)}, {v(mean)}")
        a(f"v_cvt_pk_bf16_f32 {v(t)}, {v(f0)}, {v(f1)}")
        self.unpack(f0, f1, t)
        for f in (f0, f1):
            a(f"v_mul_f32 {v(t)}, {v(f)}, {v(rs)}")
            a(f"v_fma_f32 {v(f)}, -{v(t)}, {v(sd)}, {v(f)}")
            a(f"v_fma_f32 {v(f)}, {v(f)}, {v(rs)}, {v(t)}")
        a(f"v_cvt_pk_bf16_f32 {v(dst)}, {v(f0)}, {v(f1)}")

    def side_blocks(self):
        a = self.a
        f, mean, sd, rs, t = vTmp, vTmp + 8, vTmp + 9, vTmp + 10, vTmp + 11
        def b_sum():
            a(f"s_lshl_b32 {s(sT0)}, {s(sR)}, 2\ns_lshl_b32 {s(sT1)}, {s(sW)}, 10\ns_add_u32 {s(sT0)}, {s(sT0)}, {s(sT1)}")
            a(f"v_mov_b32 {v(vH0)}, {s(sT0)}\nds_read_b32 {v(vH1)}, {v(vH0)} offset:{XN}")
            self.ln_sum(f, mean, t)
        def b_var():
            self.ln_var(f, mean, sd, rs, t)
            a("s_waitcnt lgkmcnt(0)")
            self.unpack(f, f + 1, vH1)
            self.ln_pair(vH1, f, f + 1, mean, sd, rs, t)
            a(f"v_lshlrev_b32 {v(vH0)}, 16, {v(vH1)}\nv_and_b32 {v(vH1)}, {s(sHiM)}, {v(vH1)}")
            a(f"v_mov_b32 {v(vAcc0)}, 0\nv_mov_b32 {v(vAcc1)}, 0")
        def piece(k, col):
            def run():
                wl, wh, bl, bh, u0, u1, t0, t1 = range(vTmp, vTmp + 8)
                if k == 0 and col == 0:
                    self.wait_for("w2")
                if col == 0:
                    self.unpack(wl, wh, vW1 + k)
                    self.unpack(bl, bh, vB1 + k)
                h = vH1 if col else vH0
                acc = vAcc1 if col else vAcc0
                a(f"v_mul_f32 {v(u0)}, {v(h)}, {v(wl)}\nv_mul_f32 {v(u1)}, {v(h)}, {v(wh)}")
                a(f"v_cvt_pk_bf16_f32 {v(t0)}, {v(u0)}, {v(u1)}")
                self.unpack(u0, u1, t0)
                a(f"v_add_f32 {v(u0)}, {v(u0)}, {v(bl)}\nv_add_f32 {v(u1)}, {v(u1)}, {v(bh)}")
                a(f"v_cvt_pk_bf16_f32 {v(t0)}, {v(u0)}, {v(u1)}")
                self.unpack(u0, u1, t0)
                a(f"v_mul_f32 {v(t0)}, {v(u0)}, {v(u0)}\nv_mul_f32 {v(t1)}, {v(u1)}, {v(u1)}")
                a(f"v_mov_b32 {v(vTmp+8)}, {fbits(C1)}")
                a(f"v_fmaak_f32 {v(t0)}, {v(t0)}, {v(vTmp+8)}, {fbits(C2)}\nv_fmaak_f32 {v(t1)}, {v(t1)}, {v(vTmp+8)}, {fbits(C2)}")
                a(f"v_mul_f32 {v(t0)}, {v(t0)}, {v(u0)}\nv_mul_f32 {v(t1)}, {v(t1)}, {v(u1)}")
                a(f"v_exp_f32 {v(t0)}, {v(t0)}\nv_exp_f32 {v(t1)}, {v(t1)}")
                a(f"v_add_f32 {v(t0)}, 1.0, {v(t0)}\nv_add_f32 {v(t1)}, 1.0, {v(t1)}")
                a(f"v_rcp_f32 {v(t0)}, {v(t0)}\nv_rcp_f32 {v(t1)}, {v(t1)}")
                a(f"v_mul_f32 {v(u0)}, {v(u0)}, {v(t0)}\nv_mul_f32 {v(u1)}, {v(u1)}, {v(t1)}")
                a(f"v_cvt_pk_bf16_f32 {v(t0)}, {v(u0)}, {v(u1)}")
                a(f"v_dot2_f32_bf16 {v(acc)}, {v(t0)}, {v(vW2+k)}, {v(acc)}")
            return run
        def b_red():
            self.allreduce([vAcc0, vAcc1], vTmp)
            a(f"s_lshl_b32 {s(sT0)}, {s(sW)}, 3\nv_mov_b32 {v(vTmp)}, {s(sT0)}")
            a(f"v_mov_b32 {v(vTmp+2)}, {v(vAcc0)}\nv_mov_b32 {v(vTmp+3)}, {v(vAcc1)}")
            a(f"ds_write_b64 {v(vTmp)}, {v(vTmp+2,2)} offset:{BP}")
        return [b_sum, b_var] + [piece(k, c) for k in range(4) for c in range(2)] + [b_red]

    def post_ops(self, g):
        pk = vPk + (g & 1)
        return [f"v_cvt_pk_bf16_f32 {v(pk)}, {v(pk)}, {v(pk)}", f"v_lshlrev_b32 {v(pk)}, 16, {v(pk)}",
                f"v_mul_f32 {v(pk)}, {fbits(128 ** -0.5)}, {v(pk)}",
                f"v_cvt_pk_bf16_f32 {v(pk)}, {v(pk)}, {v(pk)}", f"v_lshlrev_b32 {v(pk)}, 16, {v(pk)}",
                f"v_max_f32 {v(vM)}, {v(vM)}, {v(pk)}",
                f"ds_write_b32 {v(vLa)}, {v(pk)} offset:{SC + 4 * (g & 3)}"] + ([f"v_add_u32 {v(vLa)}, 0x400, {v(vLa)}"] if g & 3 == 3 else [])
    def dpp_ops(self, m):
        S = vS2 + (m & 1)
        ops = [f"v_add_f32_dpp {v(S)}, {v(S)}, {v(S)} row_ror:{r} row_mask:0xf bank_mask:0xf" for r in (8, 4, 2)]
        return ops + [f"v_add_f32_dpp {v(vPk + ((m >> 2) & 1))}, {v(S)}, {v(S)} row_ror:1 row_mask:0xf bank_mask:{hex(1 << (m & 3))}"]
    def kstep(self, m, pre=None):
        a = self.a
        K = self.slot(m); S = vS2 + (m & 1)
        self.wait_for(("kv", m))
        if pre:
            a(pre)
        fill = self.issue_at(m) + self.fill[:2]
        del self.fill[:2]
        dpp = self.dpp_ops(m - 1) if m else []
        for k in range(4):
            a(f"v_dot2_f32_bf16 {v(S)}, {v(K+k)}, {v(vQ+k)}, " + ("0" if k == 0 else v(S)))
            if k and fill:
                a(fill.pop(0))
            if dpp:
                a(dpp[k])
        assert not fill
        self.used = m + 1
        if m and (m - 1) & 3 == 3:
            self.fill += self.post_ops((m - 1) >> 2)

    def p_ops(self, g):
        return [f"v_fma_f32 {v(vT)}, {v(vSc + (g & 3))}, {s(sLog2e)}, -{v(vML)}", f"v_exp_f32 {v(vPf + (g & 1))}, {v(vT)}",
                f"v_cvt_pk_bf16_f32 {v(vPp + (g & 1))}, {v(vPf + (g & 1))}, {v(vPf + (g & 1))}"]
    def vstep(self, n):
        a = self.a
        g, q = n >> 2, n & 3
        nxt = self.p_ops(g + 1)
        if q == 0:
            a(f"v_add_f32 {v(vL)}, {v(vL)}, {v(vPf + (g & 1))}")
        if q == 1:
            if g & 3 == 3:
                a("s_waitcnt lgkmcnt(0)")
            a(nxt[0]); a(nxt[1])
        if q == 2:
            a(nxt[2])
            if g & 3 == 2:
                a(f"ds_read_b128 {v(vSc,4)}, {v(vLa)} offset:{SC}\nv_add_u32 {v(vLa)}, 0x400, {v(vLa)}")
        for k in range(4):
            a(f"v_and_b32_dpp {v(vA+k)}, {v(vPp + (g & 1))}, {v(vMask+k)} row_newbcast:{4*q} row_mask:0xf bank_mask:0xf")
        self.wait_for(("kv", 256 + n))
        for t in self.issue_at(256 + n):
            a(t)
        a(f"v_mfma_f32_16x16x32_bf16 {v(vO,4)}, {v(vA,4)}, {v(self.slot(256 + n),4)}, {v(vO,4)}")
        self.used = 256 + n + 1

    def srd(self, q, size):
        self.a(f"s_mov_b32 {s(q+2)}, {size}\ns_mov_b32 {s(q+3)}, 0x20000")

    def build(self):
        a, c = self.a, self.c
        S, FL = c["S"], c["FL"]
        a(f"{NAME}:")
        a("s_cmp_ge_u32 s2, 256\ns_cbranch_scc1 L_done")
        a(f"s_load_dwordx16 {s(ARG,16)}, s[0:1], 0\ns_load_dwordx8 {s(ARG+16,8)}, s[0:1], 64\ns_load_dwordx2 {s(WSSRD,2)}, s[0:1], 96")
        if c["diag"]:
            a(f"s_memrealtime s[72:73]\ns_mov_b32 {s(sStampN)}, 1\nv_mov_b32 {v(vStamp)}, 0")
        a(f"v_lshrrev_b32 {v(vT)}, 6, {v(vTid)}\nv_and_b32 {v(vLane)}, 63, {v(vTid)}")
        a(f"v_readfirstlane_b32 {s(sW)}, {v(vT)}")
        a(f"v_lshlrev_b32 {v(vL16)}, 4, {v(vLane)}")
        if c["hmap"] == "l":
            a(f"s_and_b32 {s(sH)}, s2, 31\ns_lshr_b32 {s(sSp)}, s2, 5")
        else:
            a(f"s_lshr_b32 {s(sH)}, s2, 3\ns_and_b32 {s(sSp)}, s2, 7")
        a(f"s_lshl_b32 {s(sR)}, {s(sH)}, 3\ns_add_u32 {s(sR)}, {s(sR)}, {s(sSp)}")
        a(f"s_lshl_b32 {s(sT0)}, {s(sR)}, 20\ns_lshl_b32 {s(sKV)}, {s(sW)}, 10\ns_mov_b32 {s(sVV)}, {s(sKV)}")
        if c["phase"] == "gi":
            a(f"s_bfe_u32 {s(sPh)}, s2, 0x30003\ns_lshl_b32 {s(sPh)}, {s(sPh)}, 16")
        else:
            a(f"s_mov_b32 {s(sPh)}, 0")
        self.srd(KSRD, 1 << 20); self.srd(WQSRD, 4 << 20); self.srd(XSRD, 1024)
        a(f"v_lshrrev_b32 {v(vU)}, 4, {v(vLane)}\nv_and_b32 {v(vT)}, 0xf0, {v(vL16)}")
        a(f"v_lshl_add_u32 {v(vWq)}, {v(vU)}, 18, {v(vT)}\nv_lshl_add_u32 {v(vWo)}, {v(vU)}, 15, {v(vT)}")
        a(f"s_lshl_b32 {s(sWoff)}, {s(sW)}, 20\ns_lshl_b32 {s(sT1)}, {s(sH)}, 8\ns_add_u32 {s(sWoff)}, {s(sWoff)}, {s(sT1)}")
        a("s_waitcnt lgkmcnt(0)")
        a(f"s_mov_b64 {s(XSRD,2)}, {s(ARG,2)}")
        a(f"s_add_u32 {s(KSRD)}, {s(ARG+2)}, {s(sT0)}\ns_addc_u32 {s(KSRD+1)}, {s(ARG+3)}, 0")
        self.vmem(f"buffer_load_dwordx4 {v(vX,4)}, {v(vL16)}, {s(XSRD,4)}, 0 offen", "x")
        a(f"s_add_u32 {s(VSRD)}, {s(ARG+4)}, {s(sT0)}\ns_addc_u32 {s(VSRD+1)}, {s(ARG+5)}, 0")
        a(f"s_mov_b64 {s(WQSRD,2)}, {s(ARG+6,2)}")
        def small_loads():
            for q, arg, size in ((W1SRD, 12, 3584), (B1SRD, 14, 3584), (W2SRD, 16, 3584), (B2SRD, 18, 2), (WOSRD, 8, 4 << 20), (OUTSRD, 20, 1024)):
                a(f"s_mov_b64 {s(q,2)}, {s(ARG+arg,2)}")
                self.srd(q, size)
            self.srd(WSSRD, (WS_DIAG + 256 * 4 * 256) if c["diag"] else WS_SIZE)
            a(f"v_lshlrev_b32 {v(vT)}, 4, {v(vTid)}\nv_mov_b32 {v(vP)}, 0")
            self.vmem(f"buffer_load_dwordx4 {v(vW1,4)}, {v(vT)}, {s(W1SRD,4)}, 0 offen", "w1")
            self.vmem(f"buffer_load_dwordx4 {v(vB1,4)}, {v(vT)}, {s(B1SRD,4)}, 0 offen", "b1")
            self.vmem(f"buffer_load_ushort {v(vB2)}, {v(vP)}, {s(B2SRD,4)}, 0 offen", "b2")
            self.vmem(f"buffer_load_dwordx4 {v(vW2,4)}, {v(vT)}, {s(W2SRD,4)}, 0 offen", "w2")
        def layernorm():
            a(f"s_mov_b32 {s(sHiM)}, 0xffff0000\ns_mov_b32 {s(sLog2e)}, {fbits(LOG2E)}")
            a(f"v_and_b32 {v(vT)}, 1, {v(vLane)}\nv_lshlrev_b32 {v(vT)}, 4, {v(vT)}\nv_mov_b32 {v(vU)}, 0xffff\nv_lshlrev_b32 {v(vU)}, {v(vT)}, {v(vU)}")
            a(f"v_bfe_u32 {v(vT)}, {v(vLane)}, 1, 2\nv_mov_b32 {v(vP)}, 0x0c0c0c0c\ns_mov_b32 {s(sT0)}, 0x01000100\ns_mov_b32 {s(sT1)}, 0x03020302")
            for k in range(4):
                a(f"v_cmp_eq_u32 vcc, {k}, {v(vT)}\nv_cndmask_b32 {v(vMask+k)}, 0, {v(vU)}, vcc")
            for k in range(4):
                a(f"v_bfi_b32 {v(vSel0+k)}, {v(vMask+k)}, {s(sT0)}, {v(vP)}\nv_bfi_b32 {v(vSel1+k)}, {v(vMask+k)}, {s(sT1)}, {v(vP)}")
            a(f"v_and_b32 {v(vAD)}, 15, {v(vLane)}\nv_lshlrev_b32 {v(vAD)}, 5, {v(vAD)}\nv_and_b32 {v(vT)}, 16, {v(vLane)}\nv_add_u32 {v(vAD)}, {v(vAD)}, {v(vT)}")
            a(f"v_mov_b32 {v(vM)}, 0xff800000\nv_mov_b32 {v(vL)}, 0")
            f, mean, sd, rs, t = vTmp, vTmp + 8, vTmp + 9, vTmp + 10, vTmp + 11
            self.wait_for("x")
            self.stamp()
            self.ln_sum(f, mean, t)
            self.ln_var(f, mean, sd, rs, t)
            for k in range(4):
                self.ln_pair(vX + k, f + 2*k, f + 2*k + 1, mean, sd, rs, t)
            a(f"s_lshl_b32 {s(sT0)}, {s(sW)}, 10\nv_add_u32 {v(vT)}, {s(sT0)}, {v(vL16)}")
            a(f"ds_write_b128 {v(vT)}, {v(vX,4)} offset:{XN}")
            a(f"s_mul_i32 {s(sT0)}, {s(sW)}, 1280\nv_and_b32 {v(vT)}, 0x30, {v(vLane)}\nv_lshlrev_b32 {v(vT)}, 2, {v(vT)}\nv_add_u32 {v(vT)}, {s(sT0)}, {v(vT)}")
            a("s_waitcnt lgkmcnt(0)")
            for k in range(4):
                a(f"ds_read_b128 {v(vSrc+4*k,4)}, {v(vT)} offset:{XN + 16*k}")
        self.pro_total = S
        side = self.side_blocks()
        for _ in range(c["pre"]):
            self.kv_load()
        a(f"s_load_dword {s(sTag)}, {s(WSSRD,2)}, 0")
        small_loads()
        credit = 0.0
        def paced():
            if self.nxt >= c["flp"]:
                self.wait_for(("kv", self.nxt - c["flp"]))
            self.kv_load()
        for t in range(32):
            if t == c["ln_at"]:
                layernorm()
            if t >= c["side_at"] and (t - c["side_at"]) % c["side_step"] == 0 and side:
                side.pop(0)()
            self.vmem(f"buffer_load_dwordx4 a[{4*t}:{4*t+3}], {v(vWq)}, {s(WQSRD,4)}, {s(sWoff)} offen {c['wflags']}", ("wq", t))
            if t < 31:
                a(f"s_add_u32 {s(sWoff)}, {s(sWoff)}, 8192")
            credit += c["kvper"]
            while credit >= 1 and self.nxt < self.pro_total - c["post"]:
                paced(); credit -= 1
        while self.nxt < self.pro_total - c["post"]:
            paced()
        a(f"s_lshl_b32 {s(sWoff)}, {s(sH)}, 17\ns_lshl_b32 {s(sT1)}, {s(sW)}, 8\ns_add_u32 {s(sWoff)}, {s(sWoff)}, {s(sT1)}")
        a("s_waitcnt lgkmcnt(0)")
        self.stamp()
        gemv_waits = [min(63, len(self.vm) - 1 - self.vm.index(("wq", t))) for t in range(32)]
        a(f"s_call_b64 {s(LINK,2)}, L_gemv")
        self.stamp()
        a(f"s_lshl_b32 {s(sT0)}, {s(sW)}, 9\nv_add_u32 {v(vU)}, {s(sT0)}, {v(vAD)}")
        a(f"ds_write_b128 {v(vU)}, {v(vG,4)} offset:{QP}")
        while self.nxt < self.pro_total:
            self.kv_load()
        a(f"v_and_b32 {v(vT)}, 0xf0, {v(vL16)}\nv_lshlrev_b32 {v(vT)}, 1, {v(vT)}")
        a("s_waitcnt lgkmcnt(0)\ns_barrier")
        for w in range(4):
            for hf in range(2):
                dst = (vSrc + 8*w + 4*hf) if w < 2 else (vTmp + 8*(w-2) + 4*hf)
                a(f"ds_read_b128 {v(dst,4)}, {v(vT)} offset:{QP + 512*w + 16*hf}")
        a(f"s_add_u32 {s(sTag)}, {s(sTag)}, 1\ns_and_b32 {s(sTag)}, {s(sTag)}, 0xff")
        a("s_waitcnt lgkmcnt(0)")
        for k in range(8):
            a(f"v_add_f32 {v(vSrc+k)}, {v(vSrc+k)}, {v(vSrc+8+k)}\nv_add_f32 {v(vTmp+k)}, {v(vTmp+k)}, {v(vTmp+8+k)}")
        for k in range(8):
            a(f"v_add_f32 {v(vSrc+k)}, {v(vSrc+k)}, {v(vTmp+k)}")
        for k in range(4):
            a(f"v_cvt_pk_bf16_f32 {v(vQ+k)}, {v(vSrc+2*k)}, {v(vSrc+2*k+1)}")
        self.stamp()

        a(f"s_lshl_b32 {s(sT0)}, {s(sW)}, 14\nv_add_u32 {v(vLa)}, {s(sT0)}, {v(vL16)}")
        self.fill = []
        n = 0
        while True:
            self.kstep(n)
            if n >= c["wo_start"] and (n - c["wo_start"]) % c["wo_every"] == 0 and self.nwo < 32:
                self.wo_load()
            if side and n >= c["R0"]:
                side.pop(0)()
            n += 1
            if n % R == 0:
                self.stamp()
                if n >= c["R0"] and self.nwo == 32 and not side and self.nxt == n + FL:
                    break
        self.c["alpha"] = 0
        a(f"s_mov_b32 {s(sCnt)}, {(256 - n) // R}")
        self.vm = [("kv", i) for i in range(n, n + FL)]
        fill0 = list(self.fill)
        a("L_loop1:")
        for k in range(R):
            sw = None
            if k == R - FL:
                sw = (f"s_cmp_eq_u32 {s(sCnt)}, 1\ns_cselect_b64 {s(KSRD,2)}, {s(VSRD,2)}, {s(KSRD,2)}\n"
                      f"s_cselect_b32 {s(sKV)}, {s(sVV)}, {s(sKV)}")
            self.kstep(n + k, sw)
        assert self.fill == fill0, (self.fill, fill0)
        self.stamp()
        a(f"s_sub_u32 {s(sCnt)}, {s(sCnt)}, 1\ns_cmp_lg_u32 {s(sCnt)}, 0\ns_cbranch_scc1 L_loop1")
        for t in self.fill + self.dpp_ops(255) + self.post_ops(63):
            a(t)
        a(f"s_lshl_b32 {s(sT0)}, {s(sW)}, 14\nv_add_u32 {v(vLa)}, {s(sT0)}, {v(vL16)}")
        for ror in (8, 4):
            a(f"v_max_f32_dpp {v(vM)}, {v(vM)}, {v(vM)} row_ror:{ror} row_mask:0xf bank_mask:0xf")
        a("s_waitcnt lgkmcnt(0)")
        a(f"ds_read_b128 {v(vSc,4)}, {v(vLa)} offset:{SC}\nv_add_u32 {v(vLa)}, 0x400, {v(vLa)}")
        self.rowreduce([vM], vT, "max")
        a(f"v_mul_f32 {v(vML)}, {s(sLog2e)}, {v(vM)}\ns_mov_b32 {s(sCnt)}, 16\ns_waitcnt lgkmcnt(0)")
        for t in self.p_ops(0):
            a(t)
        self.nxt, self.used = 256 + FL, 256
        self.vm = [("kv", i) for i in range(256, 256 + FL)]
        a("s_nop 1\nL_loop2:")
        for k in range(R):
            self.vstep(k)
        self.stamp()
        a(f"s_sub_u32 {s(sCnt)}, {s(sCnt)}, 1\ns_cmp_lg_u32 {s(sCnt)}, 0\ns_cbranch_scc1 L_loop2")

        for ror in (8, 4):
            a(f"v_add_f32_dpp {v(vL)}, {v(vL)}, {v(vL)} row_ror:{ror} row_mask:0xf bank_mask:0xf")
        self.rowreduce([vL], vT)
        a(f"v_mov_b32 {v(vTmp)}, {v(vM)}\nv_mov_b32 {v(vTmp+1)}, {v(vL)}")
        a(f"s_lshl_b32 {s(sT0)}, {s(sW)}, 3\nv_mov_b32 {v(vT)}, {s(sT0)}")
        a(f"ds_write_b64 {v(vT)}, {v(vTmp,2)} offset:{MLW}")
        a(f"ds_write_b128 {v(vU)}, {v(vO,4)} offset:{OP}")
        a(f"v_lshlrev_b32 {v(vT)}, 3, {v(vLane)}\nv_mov_b32 {v(vP)}, 0")
        a("s_waitcnt lgkmcnt(0)\ns_barrier")
        ml, op, bp = vTmp, vSrc, vSrc + 8
        a(f"ds_read_b128 {v(ml,4)}, {v(vP)} offset:{MLW}\nds_read_b128 {v(ml+4,4)}, {v(vP)} offset:{MLW+16}")
        for w in range(4):
            a(f"ds_read_b64 {v(op+2*w,2)}, {v(vT)} offset:{OP + 512*w}")
        a(f"ds_read_b128 {v(bp,4)}, {v(vP)} offset:{BP}\nds_read_b128 {v(bp+4,4)}, {v(vP)} offset:{BP+16}")
        a(f"s_lshl_b32 {s(sT0)}, {s(sW)}, 9\nv_lshlrev_b32 {v(vT)}, 2, {v(vLane)}\nv_add_u32 {v(vT)}, {s(sT0)}, {v(vT)}")
        a("s_waitcnt lgkmcnt(6)")
        a(f"v_max3_f32 {v(vM)}, {v(ml)}, {v(ml+2)}, {v(ml+4)}\nv_max_f32 {v(vM)}, {v(vM)}, {v(ml+6)}")
        a(f"v_mul_f32 {v(vML)}, {s(sLog2e)}, {v(vM)}")
        for w in range(4):
            a(f"v_mul_f32 {v(ml+2*w)}, {s(sLog2e)}, {v(ml+2*w)}")
        for w in range(4):
            a(f"v_sub_f32 {v(ml+2*w)}, {v(ml+2*w)}, {v(vML)}")
        for w in range(4):
            a(f"v_exp_f32 {v(ml+2*w)}, {v(ml+2*w)}")
        a("s_waitcnt lgkmcnt(2)")
        o0, o1, hi, lo = vTmp + 8, vTmp + 9, vTmp + 10, vTmp + 11
        a(f"v_mul_f32 {v(o0)}, {v(ml)}, {v(op)}\nv_mul_f32 {v(o1)}, {v(ml)}, {v(op+1)}")
        for w in range(1, 4):
            a(f"v_fmac_f32 {v(o0)}, {v(ml+2*w)}, {v(op+2*w)}\nv_fmac_f32 {v(o1)}, {v(ml+2*w)}, {v(op+2*w+1)}")
        a(f"v_cvt_pk_bf16_f32 {v(hi)}, {v(o0)}, {v(o1)}")
        self.unpack(vTmp + 12, vTmp + 13, hi)
        a(f"v_sub_f32 {v(o0)}, {v(o0)}, {v(vTmp+12)}\nv_sub_f32 {v(o1)}, {v(o1)}, {v(vTmp+13)}")
        a(f"v_cvt_pk_bf16_f32 {v(lo)}, {v(o0)}, {v(o1)}")
        a(f"ds_write_b32 {v(vT)}, {v(hi)} offset:{OH}\nds_write_b32 {v(vT)}, {v(lo)} offset:{OH+256}")
        rec = vTmp + 12
        a(f"v_mul_f32 {v(rec+1)}, {v(ml)}, {v(ml+1)}")
        for w in range(1, 4):
            a(f"v_fmac_f32 {v(rec+1)}, {v(ml+2*w)}, {v(ml+2*w+1)}")
        a(f"v_and_b32 {v(vT)}, 8, {v(vLane)}\nv_lshlrev_b32 {v(vT)}, 5, {v(vT)}\nv_and_b32 {v(vS)}, 0x30, {v(vLane)}\nv_lshl_add_u32 {v(vT)}, {v(vS)}, 2, {v(vT)}\nv_add_u32 {v(vT)}, {s(sT0)}, {v(vT)}")
        a("s_waitcnt lgkmcnt(0)")
        for j in range(2):
            a(f"v_add_f32 {v(rec+2+j)}, {v(bp+j)}, {v(bp+2+j)}\nv_add_f32 {v(vS)}, {v(bp+4+j)}, {v(bp+6+j)}\nv_add_f32 {v(rec+2+j)}, {v(rec+2+j)}, {v(vS)}")
        for k in range(4):
            a(f"ds_read_b128 {v(vSrc+4*k,4)}, {v(vT)} offset:{OH + 16*k}")
        a(f"v_lshlrev_b32 {v(vB2)}, 16, {v(vB2)}")
        for j in range(2):
            self.round1(rec + 2 + j)
            a(f"v_add_f32 {v(rec+2+j)}, {v(rec+2+j)}, {v(vB2)}")
            self.round1(rec + 2 + j)
        a(f"v_mov_b32 {v(rec)}, {v(vM)}\nv_mov_b32 {v(vP)}, 0xff\nv_mov_b32 {v(vS)}, {s(sTag)}")
        for k in range(4):
            a(f"v_bfi_b32 {v(rec+k)}, {v(vP)}, {v(vS)}, {v(rec+k)}")
        a(f"s_lshl_b32 {s(sMo)}, {s(sR)}, 4\ns_add_u32 {s(sMo)}, {s(sMo)}, {WS_ML}\nv_mov_b32 {v(vT)}, 0")
        a("s_waitcnt vmcnt(0)")
        a(f"s_cmp_lg_u32 {s(sW)}, 0\ns_cbranch_scc1 L_norec\ns_mov_b64 exec, 1")
        a(f"buffer_store_dwordx4 {v(rec,4)}, {v(vT)}, {s(WSSRD,4)}, {s(sMo)} offen sc1")
        a("s_mov_b64 exec, -1\nL_norec:")
        a(f"s_lshl_b32 {s(sYo)}, {s(sR)}, 11\ns_add_u32 {s(sYo)}, {s(sYo)}, {s(sT0)}\ns_add_u32 {s(sYo)}, {s(sYo)}, {WS_Y}")
        a("s_waitcnt lgkmcnt(0)")
        self.stamp()
        a(f"s_call_b64 {s(LINK,2)}, L_gemv")
        for k in range(4):
            a(f"v_mov_b32 {v(vTmp+k)}, {v(vG+k)}")
        for k in range(4):
            a(f"v_permlane32_swap_b32 {v(vG+k)}, {v(vTmp+k)}")
        for k in range(4):
            a(f"v_add_f32 {v(vG+k)}, {v(vG+k)}, {v(vTmp+k)}")
        for k in range(4):
            a(f"v_bfi_b32 {v(vG+k)}, {v(vP)}, {v(vS)}, {v(vG+k)}")
        a("s_mov_b32 exec_hi, 0")
        a(f"buffer_store_dwordx4 {v(vG,4)}, {v(vAD)}, {s(WSSRD,4)}, {s(sYo)} offen sc1")
        a("s_mov_b32 exec_hi, -1")
        self.stamp()
        a("s_cmp_ge_u32 s2, 32\ns_cbranch_scc1 L_fin")

        Y, ML2 = vRing, vRing + 16
        vYo, vMo, vBa, vRa, acc = vRing + 24, vRing + 25, vRing + 26, vRing + 28, vRing + 32
        e, lsum, bad = vRing + 40, vRing + 42, vRing + 44
        acc2 = vSrc
        a(f"v_lshrrev_b32 {v(vT)}, 1, {v(vLane)}\nv_lshlrev_b32 {v(vMo)}, 4, {v(vT)}\nv_lshlrev_b32 {v(vYo)}, 11, {v(vT)}")
        a(f"v_and_b32 {v(vU)}, 1, {v(vLane)}\nv_lshlrev_b32 {v(vU)}, 5, {v(vU)}\nv_add_u32 {v(vYo)}, {v(vYo)}, {v(vU)}")
        a(f"s_lshl_b32 {s(sYo)}, {s(sW)}, 17\ns_lshl_b32 {s(sT0)}, s2, 6\ns_add_u32 {s(sYo)}, {s(sYo)}, {s(sT0)}\ns_add_u32 {s(sYo)}, {s(sYo)}, {WS_Y}\ns_add_u32 {s(sYo2)}, {s(sYo)}, 65536")
        a(f"s_lshl_b32 {s(sMo)}, {s(sW)}, 10\ns_add_u32 {s(sMo)}, {s(sMo)}, {WS_ML}")
        a(f"v_and_b32 {v(vXc)}, 15, {v(vLane)}\nv_lshlrev_b32 {v(vXc)}, 1, {v(vXc)}\ns_lshl_b32 {s(sT0)}, s2, 5")
        a(f"buffer_load_ushort {v(vH0)}, {v(vXc)}, {s(XSRD,4)}, {s(sT0)} offen")
        a(f"v_lshrrev_b32 {v(vP)}, 4, {v(vLane)}\ns_lshl_b32 {s(sT0)}, {s(sW)}, 8\nv_lshl_add_u32 {v(vRa)}, {v(vP)}, 6, {v(vU)}\nv_add_u32 {v(vRa)}, {s(sT0)}, {v(vRa)}")
        a(f"v_and_b32 {v(vT)}, 7, {v(vT)}\nv_lshlrev_b32 {v(vT)}, 3, {v(vT)}\nv_add_u32 {v(vU)}, {DUM - BB}, {v(vT)}")
        a(f"s_lshl_b32 {s(sT0)}, {s(sW)}, 3\ns_sub_u32 {s(sT0)}, s2, {s(sT0)}")
        for i in range(2):
            a(f"v_cmp_eq_u32 vcc, {s(sT0)}, {v(vP)}\nv_cndmask_b32 {v(vBa+i)}, {v(vU)}, {v(vT)}, vcc")
            if i == 0:
                a(f"s_sub_u32 {s(sT0)}, {s(sT0)}, 4")
        a(f"s_mov_b32 {s(sCnt)}, {c['spin']}")
        a("L_poll:")
        for i, so in enumerate((sYo, sYo2)):
            a(f"buffer_load_dwordx4 {v(ML2+4*i,4)}, {v(vMo)}, {s(WSSRD,4)}, {s(sMo)} offen offset:{512*i} sc1")
            for hf in range(2):
                a(f"buffer_load_dwordx4 {v(Y+8*i+4*hf,4)}, {v(vYo)}, {s(WSSRD,4)}, {s(so)} offen offset:{16*hf} sc1")
        a("s_waitcnt vmcnt(0)\ns_mov_b64 exec, -1")
        a(f"v_xor_b32 {v(bad)}, {v(vS)}, {v(Y)}")
        for k in range(1, 24):
            a(f"v_bitop3_b32 {v(bad)}, {v(bad)}, {v(Y+k)}, {v(vS)} bitop3:0xf6")
        a(f"v_and_b32 {v(bad)}, 0xff, {v(bad)}\nv_cmp_ne_u32 {s(sInv,2)}, 0, {v(bad)}")
        for k in list(range(16)) + [17, 21]:
            a(f"v_and_b32 {v(acc2+k)}, 0xffffff00, {v(Y+k)}")
        for i in range(2):
            a(f"v_and_b32 {v(e+i)}, {s(sHiM)}, {v(ML2+4*i)}")
        for i in range(2):
            a(f"v_mul_f32 {v(e+i)}, {s(sLog2e)}, {v(e+i)}")
        for i in range(2):
            a(f"v_max_f32_dpp {v(lsum+i)}, {v(e+i)}, {v(e+i)} row_ror:8 row_mask:0xf bank_mask:0xf")
        for ror in (4, 2):
            for i in range(2):
                a(f"v_max_f32_dpp {v(lsum+i)}, {v(lsum+i)}, {v(lsum+i)} row_ror:{ror} row_mask:0xf bank_mask:0xf")
        for i in range(2):
            a(f"v_sub_f32 {v(e+i)}, {v(e+i)}, {v(lsum+i)}")
        for i in range(2):
            a(f"v_exp_f32 {v(e+i)}, {v(e+i)}")
        for i in range(2):
            a(f"ds_write_b64 {v(vBa+i)}, {v(ML2+4*i+2,2)} offset:{BB}")
        for i in range(2):
            a(f"v_mul_f32 {v(lsum+i)}, {v(e+i)}, {v(acc2+17+4*i)}")
        for ror in (8, 4, 2):
            for i in range(2):
                a(f"v_add_f32_dpp {v(lsum+i)}, {v(lsum+i)}, {v(lsum+i)} row_ror:{ror} row_mask:0xf bank_mask:0xf")
        for i in range(2):
            a(f"v_rcp_f32 {v(lsum+i)}, {v(lsum+i)}")
        for i in range(2):
            a(f"v_mul_f32 {v(e+i)}, {v(e+i)}, {v(lsum+i)}")
        for k in range(8):
            a(f"v_mul_f32 {v(acc+k)}, {v(e)}, {v(acc2+k)}")
        for k in range(8):
            a(f"v_fmac_f32 {v(acc+k)}, {v(e+1)}, {v(acc2+8+k)}")
        for ror in (8, 4, 2):
            for k in range(8):
                a(f"v_add_f32_dpp {v(acc+k)}, {v(acc+k)}, {v(acc+k)} row_ror:{ror} row_mask:0xf bank_mask:0xf")
        a(f"ds_write_b128 {v(vRa)}, {v(acc,4)} offset:{RED}\nds_write_b128 {v(vRa)}, {v(acc+4,4)} offset:{RED+16}")
        a(f"s_sub_u32 {s(sCnt)}, {s(sCnt)}, 1\ns_cmp_eq_u32 {s(sCnt)}, 0\ns_cbranch_scc1 L_polled")
        a(f"s_mov_b64 exec, {s(sInv,2)}\ns_cbranch_execnz L_poll")
        a("L_polled:\ns_mov_b64 exec, -1")
        a(f"v_lshlrev_b32 {v(vT)}, 2, {v(vLane)}\nv_lshlrev_b32 {v(vU)}, 1, {v(vXc)}")
        a("s_waitcnt lgkmcnt(0)\ns_barrier")
        a(f"s_cmp_lg_u32 {s(sW)}, 0\ns_cbranch_scc1 L_fin")
        a(f"ds_read2st64_b32 {v(Y,2)}, {v(vT)} offset0:{RED//256} offset1:{RED//256+1}")
        a(f"ds_read2st64_b32 {v(Y+2,2)}, {v(vT)} offset0:{RED//256+2} offset1:{RED//256+3}")
        a(f"ds_read_b32 {v(Y+4)}, {v(vU)} offset:{BB}")
        a(f"v_lshlrev_b32 {v(vH0)}, 16, {v(vH0)}\ns_lshl_b32 {s(sT0)}, s2, 5")
        a("s_waitcnt lgkmcnt(0)")
        a(f"v_add_f32 {v(Y)}, {v(Y)}, {v(Y+1)}\nv_add_f32 {v(Y+2)}, {v(Y+2)}, {v(Y+3)}\nv_add_f32 {v(Y)}, {v(Y)}, {v(Y+2)}")
        self.rowreduce([Y], vT)
        self.round1(Y)
        a(f"v_add_f32 {v(Y)}, {v(vH0)}, {v(Y)}\nv_and_b32 {v(Y+4)}, {s(sHiM)}, {v(Y+4)}")
        self.round1(Y)
        a(f"v_add_f32 {v(Y)}, {v(Y)}, {v(Y+4)}\nv_cvt_pk_bf16_f32 {v(Y)}, {v(Y)}, {v(Y)}")
        a("s_mov_b64 exec, 0xffff")
        a(f"buffer_store_short {v(Y)}, {v(vXc)}, {s(OUTSRD,4)}, {s(sT0)} offen")
        a("s_cmp_lg_u32 s2, 0\ns_cbranch_scc1 L_fin0\ns_mov_b64 exec, 1")
        a(f"buffer_store_dword {v(vS)}, {v(vXc)}, {s(WSSRD,4)}, 0 offen")
        a("L_fin0:\ns_mov_b64 exec, -1")
        a("L_fin:")
        if c["diag"]:
            self.stamp()
            a(f"s_mov_b32 m0, 0\nv_writelane_b32 {v(vStamp)}, s72, m0")
            a(f"s_getreg_b32 {s(sT0)}, hwreg(HW_REG_XCC_ID)\ns_mov_b32 m0, 63\nv_writelane_b32 {v(vStamp)}, {s(sT0)}, m0")
            a(f"s_mov_b32 m0, 62\nv_writelane_b32 {v(vStamp)}, {s(sStampN)}, m0")
            a(f"s_lshl_b32 {s(sT0)}, s2, 10\ns_add_u32 {s(sT0)}, {s(sT0)}, {WS_DIAG}\nv_lshlrev_b32 {v(vT)}, 2, {v(vTid)}")
            a(f"buffer_store_dword {v(vStamp)}, {v(vT)}, {s(WSSRD,4)}, {s(sT0)} offen")
        a("L_done:\ns_endpgm")

        a("L_gemv:")
        prev = None
        for t in range(32):
            sel = vSel1 if t & 1 else vSel0
            A = vA if t & 1 else vO
            for k in range(4):
                a(f"v_perm_b32 {v(A+k)}, {v(vSrc+t//2)}, {v(vSrc+t//2)}, {v(sel+k)}")
            if gemv_waits[t] != prev:
                a(f"s_waitcnt vmcnt({gemv_waits[t]})")
            a(f"v_mfma_f32_16x16x32_bf16 {v(vG,4)}, {v(A,4)}, a[{4*t}:{4*t+3}], " + ("0" if t == 0 else v(vG, 4)))
        for k in range(4):
            a(f"v_mov_b32 {v(vO+k)}, 0")
        a(f"s_nop 7\ns_setpc_b64 {s(LINK,2)}")

        return self.a.finish()

HEADER = open("parallel_sum__mha_block_cached__mixer_token_mlp__decode.s.ref").read().split("; Override launch")[0]

def make(**kw):
    g = Gen(**kw)
    body = g.build()
    nv = vRing + max(4 * g.c["R0"], 48)
    acc = (nv + 3) // 4 * 4
    return (HEADER + f"; @launch grid=(256,1,1) block=(256,1,1) lds={LDS_SIZE}\n"
            + '.amdgcn_target "amdgcn-amd-amdhsa--gfx950"\n.text\n'
            + f".globl {NAME}\n.p2align 8\n.type {NAME},@function\n" + body
            + f""".section .rodata,"a"
.p2align 6
.amdhsa_kernel {NAME}
  .amdhsa_next_free_vgpr {acc + 128}
  .amdhsa_next_free_sgpr 102
  .amdhsa_accum_offset {acc}
  .amdhsa_group_segment_fixed_size 0
  .amdhsa_kernarg_size 104
  .amdhsa_user_sgpr_count 2
  .amdhsa_user_sgpr_kernarg_segment_ptr 1
  .amdhsa_system_sgpr_workgroup_id_x 1
  .amdhsa_float_denorm_mode_32 3
.end_amdhsa_kernel
""")

if __name__ == "__main__":
    out = sys.argv[1]
    kw = {}
    for p in sys.argv[2:]:
        k, val = p.split("=", 1)
        try:
            val = int(val)
        except ValueError:
            try:
                val = float(val)
            except ValueError:
                val = val.replace("+", " ")
        kw[k] = val
    open(out, "w").write(make(**kw))
```

```python
import struct, sys, math
from asmlib import Asm

NAME = "parallel_sum__mha_block_cached__mixer_token_mlp__decode_kernel"

def fbits(x):
    return "0x%08x" % struct.unpack("<I", struct.pack("<f", x))[0]

LOG2E = 1.4426950408889634
C2 = -2.0 * math.sqrt(2.0 / math.pi) * LOG2E
C1 = C2 * 0.044715

XN, QP, OP, MLW, BP, OH, RED, BB, DUM, SC = 0, 4096, 6144, 8192, 8256, 8448, 10496, 11520, 11648, 12288
LDS_SIZE = SC + 4 * 16384 + 1024
WS_B, WS_Y, WS_ML = 8192, 65536, 65536 + 256 * 2048
WS_PG = WS_ML + 16 * 4352
WS_SIZE = WS_PG + 32 * 4352 + 300000
WS_DIAG = 1 << 20

vTid, vL16, vWq, vWo = 0, 1, 2, 3
vO, vA, vQ, vMask, vSel0, vSel1 = 4, 8, 12, 16, 20, 24
vM, vML, vL, vS, vT, vP, vU, vAD = 28, 29, 30, 31, 32, 33, 34, 35
vG, vSrc, vX, vW1, vB1, vW2 = 36, 40, 56, 60, 64, 68
vB2, vH0, vH1, vAcc0, vAcc1, vLane, vXc, vStamp = 72, 73, 74, 75, 76, 77, 78, 79
vTmp, vRing = 80, 96
vS2, vPk, vPf, vPp, vSc, vLa = vSrc, vSrc + 2, vSrc + 4, vSrc + 6, vSrc + 8, vSrc + 12
vOa, vHw, vHr, vZero, vTagV, vFF, vYo, vMo, vXf, vCo, vCb, vYs, vRw, vRr, vPo, vPoll, vPg, vPw = 56, 57, 58, 59, 60, 61, 62, 63, 64, 65, 66, 67, 68, 69, 70, 71, 73, 74
sW, sH, sSp, sR, sKV, sCnt, sTag, sWoff, sLog2e, sT0, sT1 = 3, 50, 51, 52, 53, 54, 55, 56, 57, 58, 59
sInv, sRL, sHiM, sYo, sYo2, sMo, sStampN, sVV = 60, 62, 66, 67, 68, 69, 70, 71
sPh, sAd = 100, 101
sYi, sBo, sOo, sWarm, sCoef, sInvM, sInvY, sMi = 62, 76, 77, 78, 79, 80, 82, 84
sPgO, sBase, sAt, sWant, sState = 72, 73, 90, 91, 92
sPeer = 24
KSRD, VSRD, WQSRD, WOSRD, W1SRD, B1SRD, W2SRD, B2SRD, OUTSRD, WSSRD, XSRD = 8, 12, 16, 20, 24, 28, 32, 36, 40, 44, 4
LINK = 48
FLAG = BB
ARG = 76

def v(i, n=1):
    return f"v{i}" if n == 1 else f"v[{i}:{i+n-1}]"
def s(i, n=1):
    return f"s{i}" if n == 1 else f"s[{i}:{i+n-1}]"

DEFAULT = dict(R0=40, S=40, FL=5, alpha=0.25, pre=6, kvper=0.9, post=6, flp=6, ln_at=4, side_at=8, side_step=2,
               wo_start=32, wo_every=2, gran=1, tail=16, tail_rate=2, tail_max=40, gw=4, ncons=32, outflags="", nap=0, mlstride=4352, early_y=0, ctl1=0, ctl2=0, thr=4, cmode=1, cwave=0, cst=1, cld=1, cfl="sc1", cw=0, cevery=1, clast=99, frac=1, fper=4, ystore=4, yflags="sc1", wflags="nt", kvflags="nt", diag=0, spin=1 << 20, hmap="l", phase="gi")
R = 16

class Gen:
    def __init__(self, **kw):
        self.c = dict(DEFAULT); self.c.update(kw)
        self.a = Asm()
        self.vm = []
        self.stubs = []
        self.nxt = 0
        self.used = 0
        self.nwo = 0
        self.in_tail = False
        self.mute = False
        self.free_slot = {}

    def vmem(self, text, tag):
        self.a(text); self.vm.append(tag)
    def wait_for(self, tag):
        n = len(self.vm) - 1 - self.vm.index(tag)
        self.a(f"s_waitcnt vmcnt({min(n, 63)})")

    def stamp(self):
        if not self.c["diag"]:
            return
        a = self.a
        a(f"s_memrealtime s[74:75]\ns_waitcnt lgkmcnt(0)\ns_mov_b32 m0, {s(sStampN)}\nv_writelane_b32 {v(vStamp)}, s74, m0\ns_add_u32 {s(sStampN)}, {s(sStampN)}, 1")

    def slot(self, n):
        if n in self.free_slot:
            return vRing + 4 * self.free_slot[n]
        return vRing + 4 * (n if n < self.c["R0"] else n % R)
    def can(self):
        n, R0 = self.nxt, self.c["R0"]
        if self.in_tail:
            busy = {self.slot(m) for m in range(self.used, n)}
            for k in range(R0):
                if vRing + 4 * k not in busy:
                    self.free_slot[n] = k
                    return True
            return False
        prev = -1 if n < R0 else (n - R if n - R >= R0 else n % R)
        return prev < self.used
    def steady(self, n):
        g = self.c["gran"]
        return -(-(n + 1 + self.c["FL"]) // g) * g + (1 if n % self.c["fper"] < self.c["frac"] else 0)
    def kv_load(self, late_add=False):
        assert self.can()
        n = self.nxt
        self.a(f"s_xor_b32 {s(sAd)}, {s(sKV)}, {s(sPh)}")
        self.vmem(f"buffer_load_dwordx4 {v(self.slot(n),4)}, {v(vL16)}, {s(KSRD,4)}, {s(sAd)} offen {self.c['kvflags']}", ("kv", n))
        self.nxt += 1
        add = f"s_add_u32 {s(sKV)}, {s(sKV)}, 4096"
        if late_add:
            return add
        self.a(add)
    def issue_at(self, n):
        c = self.c
        if self.mute:
            return []
        want = max(self.steady(n), self.pro_total + int((n + 1) * c["alpha"]))
        if self.in_tail:
            want = min(512, max(want, min(self.nxt + c["tail_rate"], n + 1 + c["tail_max"])))
        add = None
        while self.nxt < want and (self.can() or self.nxt < self.steady(n)):
            if add:
                self.a(add)
            add = self.kv_load(late_add=True)
        return [add] if add else []

    def wo_load(self):
        t = self.nwo
        if t % 4 == 0 and t:
            self.a(f"s_add_u32 {s(sWoff)}, {s(sWoff)}, 4096")
        self.vmem(f"buffer_load_dwordx4 a[{4*t}:{4*t+3}], {v(vWo)}, {s(WOSRD,4)}, {s(sWoff)} offen offset:{(t%4)*1024} {self.c['wflags']}", ("wo", t))
        self.nwo += 1

    def allreduce(self, regs, tmp, op="add"):
        a = self.a
        for ror in (8, 4, 2, 1):
            for r in regs:
                a(f"v_{op}_f32_dpp {v(r)}, {v(r)}, {v(r)} row_ror:{ror} row_mask:0xf bank_mask:0xf")
        self.rowreduce(regs, tmp, op)
    def rowreduce(self, regs, tmp, op="add"):
        a = self.a
        for sw in (16, 32):
            for k, r in enumerate(regs):
                a(f"v_mov_b32 {v(tmp+k)}, {v(r)}")
            for k, r in enumerate(regs):
                a(f"v_permlane{sw}_swap_b32 {v(r)}, {v(tmp+k)}")
            for k, r in enumerate(regs):
                a(f"v_{op}_f32 {v(r)}, {v(r)}, {v(tmp+k)}")
    def unpack(self, dlo, dhi, src):
        self.a(f"v_lshlrev_b32 {v(dlo)}, 16, {v(src)}\nv_and_b32 {v(dhi)}, {s(sHiM)}, {v(src)}")
    def round1(self, r):
        self.a(f"v_cvt_pk_bf16_f32 {v(r)}, {v(r)}, {v(r)}\nv_lshlrev_b32 {v(r)}, 16, {v(r)}")

    def ln_sum(self, f, acc, tmp):
        a = self.a
        for k in range(4):
            self.unpack(f + 2*k, f + 2*k + 1, vX + k)
        a(f"v_add_f32 {v(acc)}, {v(f)}, {v(f+1)}\nv_add_f32 {v(tmp)}, {v(f+2)}, {v(f+3)}")
        a(f"v_add_f32 {v(acc)}, {v(acc)}, {v(tmp)}\nv_add_f32 {v(tmp)}, {v(f+4)}, {v(f+5)}")
        a(f"v_add_f32 {v(acc)}, {v(acc)}, {v(tmp)}\nv_add_f32 {v(tmp)}, {v(f+6)}, {v(f+7)}")
        a(f"v_add_f32 {v(acc)}, {v(acc)}, {v(tmp)}")
        self.allreduce([acc], tmp)
        a(f"v_mul_f32 {v(acc)}, {fbits(1/512)}, {v(acc)}")
    def ln_var(self, f, mean, sd, rs, tmp):
        a = self.a
        for k in range(8):
            a(f"v_sub_f32 {v(tmp)}, {v(f+k)}, {v(mean)}")
            a(f"v_mul_f32 {v(sd)}, {v(tmp)}, {v(tmp)}" if k == 0 else f"v_fmac_f32 {v(sd)}, {v(tmp)}, {v(tmp)}")
        self.allreduce([sd], tmp)
        a(f"v_mul_f32 {v(sd)}, {fbits(1/512)}, {v(sd)}")
        self.round1(mean)
        self.round1(sd)
        a(f"v_add_f32 {v(sd)}, {fbits(1e-5)}, {v(sd)}")
        self.round1(sd)
        a(f"v_sqrt_f32 {v(sd)}, {v(sd)}")
        self.round1(sd)
        a(f"v_rcp_f32 {v(rs)}, {v(sd)}")
    def ln_pair(self, dst, f0, f1, mean, sd, rs, t):
        a = self.a
        a(f"v_sub_f32 {v(f0)}, {v(f0)}, {v(mean)}\nv_sub_f32 {v(f1)}, {v(f1)}, {v(mean)}")
        a(f"v_cvt_pk_bf16_f32 {v(t)}, {v(f0)}, {v(f1)}")
        self.unpack(f0, f1, t)
        for f in (f0, f1):
            a(f"v_mul_f32 {v(t)}, {v(f)}, {v(rs)}")
            a(f"v_fma_f32 {v(f)}, -{v(t)}, {v(sd)}, {v(f)}")
            a(f"v_fma_f32 {v(f)}, {v(f)}, {v(rs)}, {v(t)}")
        a(f"v_cvt_pk_bf16_f32 {v(dst)}, {v(f0)}, {v(f1)}")

    def side_blocks(self):
        a = self.a
        f, mean, sd, rs, t = vTmp, vTmp + 8, vTmp + 9, vTmp + 10, vTmp + 11
        def b_sum():
            a(f"s_lshl_b32 {s(sT0)}, {s(sR)}, 2\ns_lshl_b32 {s(sT1)}, {s(sW)}, 10\ns_add_u32 {s(sT0)}, {s(sT0)}, {s(sT1)}")
            a(f"v_mov_b32 {v(vH0)}, {s(sT0)}\nds_read_b32 {v(vH1)}, {v(vH0)} offset:{XN}")
            self.ln_sum(f, mean, t)
        def b_var():
            self.ln_var(f, mean, sd, rs, t)
            a("s_waitcnt lgkmcnt(0)")
            self.unpack(f, f + 1, vH1)
            self.ln_pair(vH1, f, f + 1, mean, sd, rs, t)
            a(f"v_lshlrev_b32 {v(vH0)}, 16, {v(vH1)}\nv_and_b32 {v(vH1)}, {s(sHiM)}, {v(vH1)}")
            a(f"v_mov_b32 {v(vAcc0)}, 0\nv_mov_b32 {v(vAcc1)}, 0")
        def piece(k, col):
            def run():
                wl, wh, bl, bh, u0, u1, t0, t1 = range(vTmp, vTmp + 8)
                if k == 0 and col == 0:
                    self.wait_for("w2")
                if col == 0:
                    self.unpack(wl, wh, vW1 + k)
                    self.unpack(bl, bh, vB1 + k)
                h = vH1 if col else vH0
                acc = vAcc1 if col else vAcc0
                a(f"v_mul_f32 {v(u0)}, {v(h)}, {v(wl)}\nv_mul_f32 {v(u1)}, {v(h)}, {v(wh)}")
                a(f"v_cvt_pk_bf16_f32 {v(t0)}, {v(u0)}, {v(u1)}")
                self.unpack(u0, u1, t0)
                a(f"v_add_f32 {v(u0)}, {v(u0)}, {v(bl)}\nv_add_f32 {v(u1)}, {v(u1)}, {v(bh)}")
                a(f"v_cvt_pk_bf16_f32 {v(t0)}, {v(u0)}, {v(u1)}")
                self.unpack(u0, u1, t0)
                a(f"v_mul_f32 {v(t0)}, {v(u0)}, {v(u0)}\nv_mul_f32 {v(t1)}, {v(u1)}, {v(u1)}")
                a(f"v_mov_b32 {v(vTmp+8)}, {fbits(C1)}")
                a(f"v_fmaak_f32 {v(t0)}, {v(t0)}, {v(vTmp+8)}, {fbits(C2)}\nv_fmaak_f32 {v(t1)}, {v(t1)}, {v(vTmp+8)}, {fbits(C2)}")
                a(f"v_mul_f32 {v(t0)}, {v(t0)}, {v(u0)}\nv_mul_f32 {v(t1)}, {v(t1)}, {v(u1)}")
                a(f"v_exp_f32 {v(t0)}, {v(t0)}\nv_exp_f32 {v(t1)}, {v(t1)}")
                a(f"v_add_f32 {v(t0)}, 1.0, {v(t0)}\nv_add_f32 {v(t1)}, 1.0, {v(t1)}")
                a(f"v_rcp_f32 {v(t0)}, {v(t0)}\nv_rcp_f32 {v(t1)}, {v(t1)}")
                a(f"v_mul_f32 {v(u0)}, {v(u0)}, {v(t0)}\nv_mul_f32 {v(u1)}, {v(u1)}, {v(t1)}")
                a(f"v_cvt_pk_bf16_f32 {v(t0)}, {v(u0)}, {v(u1)}")
                a(f"v_dot2_f32_bf16 {v(acc)}, {v(t0)}, {v(vW2+k)}, {v(acc)}")
            return run
        def b_red():
            self.allreduce([vAcc0, vAcc1], vTmp)
            a(f"s_lshl_b32 {s(sT0)}, {s(sW)}, 3\nv_mov_b32 {v(vTmp)}, {s(sT0)}")
            a(f"v_mov_b32 {v(vTmp+2)}, {v(vAcc0)}\nv_mov_b32 {v(vTmp+3)}, {v(vAcc1)}")
            a(f"ds_write_b64 {v(vTmp)}, {v(vTmp+2,2)} offset:{BP}")
        return [b_sum, b_var] + [piece(k, c) for k in range(4) for c in range(2)] + [b_red]

    def late_blocks(self):
        a = self.a
        bp = vTmp
        def b_read():
            a(f"v_mov_b32 {v(vZero)}, 0\nv_mov_b32 {v(vTagV)}, {s(sTag)}\nv_mov_b32 {v(vFF)}, 0xff")
            a(f"ds_read_b128 {v(bp,4)}, {v(vZero)} offset:{BP}\nds_read_b128 {v(bp+4,4)}, {v(vZero)} offset:{BP+16}")
            a(f"s_lshl_b32 {s(sOo)}, s2, 5\nv_bfe_u32 {v(vCo)}, {v(vLane)}, 5, 1\nv_bfe_u32 {v(vT)}, {v(vLane)}, 4, 1")
            a(f"v_lshl_add_u32 {v(vCo)}, {v(vT)}, 1, {v(vCo)}\nv_and_b32 {v(vT)}, 3, {v(vLane)}\nv_lshl_add_u32 {v(vCo)}, {v(vT)}, 2, {v(vCo)}")
            a(f"v_lshlrev_b32 {v(vRr)}, 4, {v(vCo)}\ns_lshl_b32 {s(sT0)}, {s(sW)}, 2\nv_add_u32 {v(vRw)}, {s(sT0)}, {v(vRr)}")
            a(f"v_lshlrev_b32 {v(vCb)}, 2, {v(vCo)}\nv_lshlrev_b32 {v(vCo)}, 1, {v(vCo)}")
            self.vmem(f"buffer_load_ushort {v(vXf)}, {v(vCo)}, {s(XSRD,4)}, {s(sOo)} offen", "xc")
        def b_pub():
            a(f"v_lshlrev_b32 {v(vB2)}, 16, {v(vB2)}\ns_waitcnt lgkmcnt(0)")
            for j in range(2):
                a(f"v_add_f32 {v(bp+j)}, {v(bp+j)}, {v(bp+2+j)}\nv_add_f32 {v(bp+4+j)}, {v(bp+4+j)}, {v(bp+6+j)}")
            for j in range(2):
                a(f"v_add_f32 {v(bp+j)}, {v(bp+j)}, {v(bp+4+j)}")
            for j in range(2):
                self.round1(bp + j)
                a(f"v_add_f32 {v(bp+j)}, {v(bp+j)}, {v(vB2)}")
                self.round1(bp + j)
                a(f"v_or_b32 {v(bp+j)}, {v(bp+j)}, {v(vTagV)}")
            a(f"s_lshl_b32 {s(sT0)}, {s(sR)}, 3\ns_add_u32 {s(sT0)}, {s(sT0)}, {WS_B}")
            a(f"s_cmp_lg_u32 {s(sW)}, 0\ns_cbranch_scc1 L_nob\ns_mov_b64 exec, 1")
            a(f"buffer_store_dwordx2 {v(bp,2)}, {v(vZero)}, {s(WSSRD,4)}, {s(sT0)} offen sc1")
            a("s_mov_b64 exec, -1\nL_nob:")
        def addr():
            a(f"v_lshlrev_b32 {v(vOa)}, 3, {v(vLane)}\ns_lshl_b32 {s(sT0)}, {s(sW)}, 9")
            a(f"v_lshl_add_u32 {v(vHw)}, {v(vLane)}, 2, {s(sT0)}")
            a(f"v_and_b32 {v(vT)}, 8, {v(vLane)}\nv_lshlrev_b32 {v(vT)}, 5, {v(vT)}\nv_and_b32 {v(vHr)}, 0x30, {v(vLane)}")
            a(f"v_lshl_add_u32 {v(vHr)}, {v(vHr)}, 2, {v(vT)}\nv_add_u32 {v(vHr)}, {s(sT0)}, {v(vHr)}")
            a(f"s_lshl_b32 {s(sYo)}, {s(sR)}, 11\ns_add_u32 {s(sYo)}, {s(sYo)}, {s(sT0)}\ns_add_u32 {s(sYo)}, {s(sYo)}, {WS_Y}")
            ms = self.c["mlstride"]
            a(f"s_lshr_b32 {s(sMo)}, {s(sR)}, 4\ns_mul_i32 {s(sMo)}, {s(sMo)}, {ms}\ns_and_b32 {s(sT1)}, {s(sR)}, 15\ns_lshl_b32 {s(sT1)}, {s(sT1)}, 3")
            a(f"s_add_u32 {s(sMo)}, {s(sMo)}, {s(sT1)}\ns_add_u32 {s(sMo)}, {s(sMo)}, {WS_ML}")
            a(f"v_lshrrev_b32 {v(vT)}, 2, {v(vLane)}\nv_lshlrev_b32 {v(vMo)}, 3, {v(vT)}\nv_and_b32 {v(vYo)}, 3, {v(vLane)}")
            a(f"v_lshlrev_b32 {v(vYo)}, 4, {v(vYo)}\nv_lshl_add_u32 {v(vYo)}, {v(vT)}, 11, {v(vYo)}")
            a(f"v_bfe_u32 {v(vT)}, {v(vLane)}, 5, 1\nv_lshl_add_u32 {v(vYs)}, {v(vT)}, 3, {v(vAD)}")
            a(f"s_mul_i32 {s(sMi)}, {s(sW)}, {4 * ms}\ns_add_u32 {s(sMi)}, {s(sMi)}, {WS_ML}")
            a(f"s_lshl_b32 {s(sBo)}, s2, 6\ns_lshl_b32 {s(sYi)}, {s(sW)}, 17\ns_add_u32 {s(sYi)}, {s(sYi)}, {s(sBo)}")
            a(f"s_add_u32 {s(sYi)}, {s(sYi)}, {WS_Y}\ns_add_u32 {s(sBo)}, {s(sBo)}, {WS_B}")
            for i in range(1, 4):
                a(f"s_add_u32 {s(sYi+i)}, {s(sYi+i-1)}, 0x8000\ns_add_u32 {s(sMi+i)}, {s(sMi+i-1)}, {ms}")
        def pace():
            a(f"s_cmp_eq_u32 {s(sW)}, 0\ns_cselect_b32 {s(sT1)}, 0, {DUM - FLAG}\nv_mov_b32 {v(vPw)}, {s(sT1)}")
            a(f"s_mov_b32 {s(sState)}, 0\nv_mov_b32 {v(vPoll)}, 0\nds_write_b32 {v(vPw)}, {v(vZero)} offset:{FLAG}")
            if self.c["cmode"] == 2:
                a(f"s_and_b32 {s(sT0)}, s2, 7\ns_lshl_b32 {s(sT0)}, {s(sT0)}, 2\ns_cmp_eq_u32 {s(sW)}, {self.c['cwave']}\ns_cselect_b32 {s(sT1)}, {s(sT0)}, 0x7ff00000")
                a(f"s_cselect_b32 {s(sAt)}, 0, 0x7ff00000\nv_add_u32 {v(vPo)}, {s(sAt)}, {v(vL16)}\ns_mul_i32 {s(sAt)}, s2, 3456\ns_add_u32 {s(sAt)}, {s(sAt)}, {1 << 21}")
                a(f"v_mov_b32 {v(vPw)}, {s(sT1)}\ns_mov_b32 {s(sBase)}, {s(sTag)}\ns_mov_b32 {s(sWant)}, 0")
        def xcol():
            self.wait_for("xc")
            a(f"v_lshlrev_b32 {v(vXf)}, 16, {v(vXf)}")
        return [b_read, addr, b_pub, pace, None, None, None, None, xcol]

    def post_ops(self, g):
        pk = vPk + (g & 1)
        return [f"v_cvt_pk_bf16_f32 {v(pk)}, {v(pk)}, {v(pk)}", f"v_lshlrev_b32 {v(pk)}, 16, {v(pk)}",
                f"v_mul_f32 {v(pk)}, {fbits(128 ** -0.5)}, {v(pk)}",
                f"v_cvt_pk_bf16_f32 {v(pk)}, {v(pk)}, {v(pk)}", f"v_lshlrev_b32 {v(pk)}, 16, {v(pk)}",
                f"v_max_f32 {v(vM)}, {v(vM)}, {v(pk)}",
                f"ds_write_b32 {v(vLa)}, {v(pk)} offset:{SC + 4 * (g & 3)}"] + ([f"v_add_u32 {v(vLa)}, 0x400, {v(vLa)}"] if g & 3 == 3 else [])
    def dpp_ops(self, m):
        S = vS2 + (m & 1)
        ops = [f"v_add_f32_dpp {v(S)}, {v(S)}, {v(S)} row_ror:{r} row_mask:0xf bank_mask:0xf" for r in (8, 4, 2)]
        return ops + [f"v_add_f32_dpp {v(vPk + ((m >> 2) & 1))}, {v(S)}, {v(S)} row_ror:1 row_mask:0xf bank_mask:{hex(1 << (m & 3))}"]
    def kstep(self, m, pre=None):
        a = self.a
        K = self.slot(m); S = vS2 + (m & 1)
        self.wait_for(("kv", m))
        if pre:
            a(pre)
        fill = self.issue_at(m) + self.fill[:2]
        del self.fill[:2]
        dpp = self.dpp_ops(m - 1) if m else []
        for k in range(4):
            a(f"v_dot2_f32_bf16 {v(S)}, {v(K+k)}, {v(vQ+k)}, " + ("0" if k == 0 else v(S)))
            if k and fill:
                a(fill.pop(0))
            if dpp:
                a(dpp[k])
        assert not fill
        self.used = m + 1
        if m and (m - 1) & 3 == 3:
            self.fill += self.post_ops((m - 1) >> 2)

    def p_ops(self, g):
        return [f"v_fma_f32 {v(vT)}, {v(vSc + (g & 3))}, {s(sLog2e)}, -{v(vML)}", f"v_exp_f32 {v(vPf + (g & 1))}, {v(vT)}",
                f"v_cvt_pk_bf16_f32 {v(vPp + (g & 1))}, {v(vPf + (g & 1))}, {v(vPf + (g & 1))}"]
    def vstep(self, n):
        a = self.a
        g, q = n >> 2, n & 3
        nxt = self.p_ops(g + 1)
        if q == 0:
            a(f"v_add_f32 {v(vL)}, {v(vL)}, {v(vPf + (g & 1))}")
        if self.in_tail and g == 63:
            nxt = ["", "", ""]
        if q == 1:
            if g & 3 == 3 and nxt[0]:
                a("s_waitcnt lgkmcnt(0)")
            a(nxt[0]); a(nxt[1])
        if q == 2:
            a(nxt[2])
            if g & 3 == 2 and not (self.in_tail and g == 62):
                a(f"ds_read_b128 {v(vSc,4)}, {v(vLa)} offset:{SC}\nv_add_u32 {v(vLa)}, 0x400, {v(vLa)}")
        for k in range(4):
            a(f"v_and_b32_dpp {v(vA+k)}, {v(vPp + (g & 1))}, {v(vMask+k)} row_newbcast:{4*q} row_mask:0xf bank_mask:0xf")
        self.wait_for(("kv", 256 + n))
        for t in self.issue_at(256 + n):
            a(t)
        a(f"v_mfma_f32_16x16x32_bf16 {v(vO,4)}, {v(vA,4)}, {v(self.slot(256 + n),4)}, {v(vO,4)}")
        self.used = 256 + n + 1

    def loop(self, name, n, trips, step, base, ctl):
        a, c = self.a, self.c
        FL = c["FL"]
        fill0 = list(self.fill)
        def body(tag, vm):
            self.vm, self.nxt, self.used, self.fill = list(vm), base + n + sum(1 for t in vm if t[0] == 'kv'), base + n, list(fill0)
            for k in range(R):
                step(n + k)
                if k == 0:
                    a(f"{name}_{tag}1:")
                if ctl and c["cmode"] == 2 and k == 13:
                    a(f"s_waitcnt lgkmcnt(0)\ns_mov_b32 {s(sT0)}, 0")
                    for j in range(8):
                        a(f"s_cmp_eq_u32 {s(sPeer+j)}, {s(sBase)}\ns_addc_u32 {s(sT0)}, {s(sT0)}, 0")
                    a(f"s_cmp_ge_u32 {s(sT0)}, {c['thr']}\ns_cselect_b32 {s(sT0)}, 1, 0")
                    if c["cevery"] > 1 or c["clast"] < trips:
                        a(f"s_cmp_lg_u32 {s(sAt)}, 0\ns_cselect_b32 {s(sWant)}, {s(sT0)}, {s(sWant)}")
                    else:
                        a(f"s_mov_b32 {s(sWant)}, {s(sT0)}")
                if ctl and c["cmode"] == 1 and k == 13:
                    a(f"s_waitcnt lgkmcnt(0)\ns_sub_u32 {s(sT0)}, {s(sAt)}, {s(sBase)}\ns_add_u32 {s(sBase)}, {s(sBase)}, 8")
                    a(f"s_cmp_ge_i32 {s(sT0)}, {c['thr']}\ns_cselect_b32 {s(sT0)}, 1, 0\nv_mov_b32 {v(vPg)}, {s(sT0)}\nds_write_b32 {v(vPw)}, {v(vPg)} offset:{FLAG}")
                if ctl and c['cmode'] == 1 and k == 15:
                    a(f"ds_read_b32 {v(vPoll)}, {v(vZero)} offset:{FLAG}")
            assert self.fill == fill0
            self.stamp()
            a(f"s_sub_u32 {s(sCnt)}, {s(sCnt)}, 1\ns_cmp_lg_u32 {s(sCnt)}, 0")
        kv = lambda lo, hi: [("kv", base + n + i) for i in range(lo, hi)]
        a(f"s_mov_b32 {s(sCnt)}, {trips}\n{name}:")
        if not ctl:
            body("lo", kv(0, self.steady(base + n - 1) - base - n))
            a(f"s_cbranch_scc1 {name}")
            return
        assert c["gran"] == 1 and c["frac"] == 0
        extra = []
        if c["cmode"] == 1:
            a(f"s_waitcnt lgkmcnt(0)\nv_readfirstlane_b32 {s(sWant)}, {v(vPoll)}")
            a(f"s_mov_b32 {s(sAt)}, 1\ns_cmp_lg_u32 {s(sW)}, 0\ns_cbranch_scc1 {name}_noat")
            a(f"s_atomic_add {s(sAt)}, {s(WSSRD,2)}, {s(sPgO)} glc\n{name}_noat:")
        else:
            sparse = c["cevery"] > 1 or c["clast"] < trips
            if sparse:
                a(f"s_mov_b32 {s(sAt)}, 0\ns_and_b32 {s(sT0)}, {s(sCnt)}, {c['cevery'] - 1}\ns_cbranch_scc1 {name}_nocp")
                a(f"s_cmp_gt_u32 {s(sCnt)}, {c['clast']}\ns_cbranch_scc1 {name}_nocp\ns_mov_b32 {s(sAt)}, 1")
            a(f"s_add_u32 {s(sBase)}, {s(sBase)}, 0x100\ns_add_u32 {s(sPgO)}, {s(sPgO)}, 128\nv_mov_b32 {v(vPg)}, {s(sBase)}")
            if c["cld"]:
                a(f"s_load_dwordx8 {s(sPeer,8)}, {s(WSSRD,2)}, {s(sPgO)} glc")
            if c["cst"]:
                if c["cw"]:
                    a(f"s_add_u32 {s(sAt)}, {s(sAt)}, 128\ns_mov_b64 exec, {(1 << c['cw']) - 1}\nbuffer_store_dwordx4 {v(vTmp,4)}, {v(vPo)}, {s(WSSRD,4)}, {s(sAt)} offen {c['cfl']}\ns_mov_b64 exec, -1")
                else:
                    a(f"s_mov_b64 exec, 1\nbuffer_store_dword {v(vPg)}, {v(vPw)}, {s(WSSRD,4)}, {s(sPgO)} offen {c['cfl']}\ns_mov_b64 exec, -1")
                extra = [] if sparse else ["pg"]
            if sparse:
                a(f"{name}_nocp:")
        a(f"s_cmp_lg_u32 {s(sWant)}, 0\ns_cbranch_scc1 {name}_up")
        a(f"s_cmp_lg_u32 {s(sState)}, 0\ns_cbranch_scc1 {name}_down")
        body("lo", kv(0, FL) + extra)
        a(f"s_cbranch_scc1 {name}\ns_branch {name}_end")
        a(f"{name}_down:\ns_mov_b32 {s(sState)}, 0")
        self.vm, self.nxt, self.used, self.fill = kv(0, FL + 1) + extra, base + n + FL + 1, base + n, list(fill0)
        self.mute = True
        step(n)
        self.mute = False
        a(f"s_branch {name}_lo1")
        a(f"{name}_up:\ns_cmp_lg_u32 {s(sState)}, 0\ns_cbranch_scc1 {name}_hi\ns_mov_b32 {s(sState)}, 1")
        self.nxt, self.used = base + n + FL, base + n
        self.kv_load()
        a(f"{name}_hi:")
        c["FL"] = FL + 1
        body("hi", kv(0, FL) + extra + kv(FL, FL + 1))
        c["FL"] = FL
        a(f"s_cbranch_scc1 {name}\n{name}_end:")

    def srd(self, q, size):
        self.a(f"s_mov_b32 {s(q+2)}, {size}\ns_mov_b32 {s(q+3)}, 0x20000")

    def build(self):
        a, c = self.a, self.c
        S, FL = c["S"], c["FL"]
        a(f"{NAME}:")
        a("s_cmp_ge_u32 s2, 256\ns_cbranch_scc1 L_done")
        a(f"s_load_dwordx16 {s(ARG,16)}, s[0:1], 0\ns_load_dwordx8 {s(ARG+16,8)}, s[0:1], 64\ns_load_dwordx2 {s(WSSRD,2)}, s[0:1], 96")
        if c["diag"]:
            a(f"s_memrealtime s[74:75]\ns_mov_b32 {s(sStampN)}, 1\nv_mov_b32 {v(vStamp)}, 0")
        a(f"v_lshrrev_b32 {v(vT)}, 6, {v(vTid)}\nv_and_b32 {v(vLane)}, 63, {v(vTid)}")
        a(f"v_readfirstlane_b32 {s(sW)}, {v(vT)}")
        a(f"v_lshlrev_b32 {v(vL16)}, 4, {v(vLane)}")
        if c["hmap"] == "l":
            a(f"s_and_b32 {s(sH)}, s2, 31\ns_lshr_b32 {s(sSp)}, s2, 5")
        else:
            a(f"s_lshr_b32 {s(sH)}, s2, 3\ns_and_b32 {s(sSp)}, s2, 7")
        a(f"s_lshl_b32 {s(sR)}, {s(sH)}, 3\ns_add_u32 {s(sR)}, {s(sR)}, {s(sSp)}")
        a(f"s_lshl_b32 {s(sT0)}, {s(sR)}, 20\ns_lshl_b32 {s(sKV)}, {s(sW)}, 10\ns_mov_b32 {s(sVV)}, {s(sKV)}")
        if c["phase"] == "gi":
            a(f"s_bfe_u32 {s(sPh)}, s2, 0x30003\ns_lshl_b32 {s(sPh)}, {s(sPh)}, 16")
        else:
            a(f"s_mov_b32 {s(sPh)}, 0")
        self.srd(KSRD, 1 << 20); self.srd(WQSRD, 4 << 20); self.srd(XSRD, 1024)
        a(f"v_lshrrev_b32 {v(vU)}, 4, {v(vLane)}\nv_and_b32 {v(vT)}, 0xf0, {v(vL16)}")
        a(f"v_lshl_add_u32 {v(vWq)}, {v(vU)}, 18, {v(vT)}\nv_lshl_add_u32 {v(vWo)}, {v(vU)}, 15, {v(vT)}")
        a(f"s_lshl_b32 {s(sWoff)}, {s(sW)}, 20\ns_lshl_b32 {s(sT1)}, {s(sH)}, 8\ns_add_u32 {s(sWoff)}, {s(sWoff)}, {s(sT1)}")
        a("s_waitcnt lgkmcnt(0)")
        if c["diag"]:
            a(f"v_writelane_b32 {v(vStamp)}, s74, 0")
        a(f"s_mov_b64 {s(XSRD,2)}, {s(ARG,2)}")
        a(f"s_add_u32 {s(KSRD)}, {s(ARG+2)}, {s(sT0)}\ns_addc_u32 {s(KSRD+1)}, {s(ARG+3)}, 0")
        self.vmem(f"buffer_load_dwordx4 {v(vX,4)}, {v(vL16)}, {s(XSRD,4)}, 0 offen", "x")
        a(f"s_add_u32 {s(VSRD)}, {s(ARG+4)}, {s(sT0)}\ns_addc_u32 {s(VSRD+1)}, {s(ARG+5)}, 0")
        a(f"s_mov_b64 {s(WQSRD,2)}, {s(ARG+6,2)}")
        def small_loads():
            for q, arg, size in ((W1SRD, 12, 3584), (B1SRD, 14, 3584), (W2SRD, 16, 3584), (B2SRD, 18, 2), (WOSRD, 8, 4 << 20), (OUTSRD, 20, 1024)):
                a(f"s_mov_b64 {s(q,2)}, {s(ARG+arg,2)}")
                self.srd(q, size)
            self.srd(WSSRD, (4 << 20) if c["diag"] else WS_SIZE)
            a(f"v_lshlrev_b32 {v(vT)}, 4, {v(vTid)}\nv_mov_b32 {v(vP)}, 0")
            self.vmem(f"buffer_load_dwordx4 {v(vW1,4)}, {v(vT)}, {s(W1SRD,4)}, 0 offen", "w1")
            self.vmem(f"buffer_load_dwordx4 {v(vB1,4)}, {v(vT)}, {s(B1SRD,4)}, 0 offen", "b1")
            self.vmem(f"buffer_load_ushort {v(vB2)}, {v(vP)}, {s(B2SRD,4)}, 0 offen", "b2")
            self.vmem(f"buffer_load_dwordx4 {v(vW2,4)}, {v(vT)}, {s(W2SRD,4)}, 0 offen", "w2")
        def layernorm():
            a(f"s_mov_b32 {s(sHiM)}, 0xffff0000\ns_mov_b32 {s(sLog2e)}, {fbits(LOG2E)}")
            a(f"v_and_b32 {v(vT)}, 1, {v(vLane)}\nv_lshlrev_b32 {v(vT)}, 4, {v(vT)}\nv_mov_b32 {v(vU)}, 0xffff\nv_lshlrev_b32 {v(vU)}, {v(vT)}, {v(vU)}")
            a(f"v_bfe_u32 {v(vT)}, {v(vLane)}, 1, 2\nv_mov_b32 {v(vP)}, 0x0c0c0c0c\ns_mov_b32 {s(sT0)}, 0x01000100\ns_mov_b32 {s(sT1)}, 0x03020302")
            for k in range(4):
                a(f"v_cmp_eq_u32 vcc, {k}, {v(vT)}\nv_cndmask_b32 {v(vMask+k)}, 0, {v(vU)}, vcc")
            for k in range(4):
                a(f"v_bfi_b32 {v(vSel0+k)}, {v(vMask+k)}, {s(sT0)}, {v(vP)}\nv_bfi_b32 {v(vSel1+k)}, {v(vMask+k)}, {s(sT1)}, {v(vP)}")
            a(f"v_and_b32 {v(vAD)}, 15, {v(vLane)}\nv_lshlrev_b32 {v(vAD)}, 5, {v(vAD)}\nv_and_b32 {v(vT)}, 16, {v(vLane)}\nv_add_u32 {v(vAD)}, {v(vAD)}, {v(vT)}")
            a(f"v_mov_b32 {v(vM)}, 0xff800000\nv_mov_b32 {v(vL)}, 0")
            f, mean, sd, rs, t = vTmp, vTmp + 8, vTmp + 9, vTmp + 10, vTmp + 11
            self.wait_for("x")
            self.stamp()
            self.ln_sum(f, mean, t)
            self.ln_var(f, mean, sd, rs, t)
            for k in range(4):
                self.ln_pair(vX + k, f + 2*k, f + 2*k + 1, mean, sd, rs, t)
            a(f"s_lshl_b32 {s(sT0)}, {s(sW)}, 10\nv_add_u32 {v(vT)}, {s(sT0)}, {v(vL16)}")
            a(f"ds_write_b128 {v(vT)}, {v(vX,4)} offset:{XN}")
            a(f"s_mul_i32 {s(sT0)}, {s(sW)}, 1280\nv_and_b32 {v(vT)}, 0x30, {v(vLane)}\nv_lshlrev_b32 {v(vT)}, 2, {v(vT)}\nv_add_u32 {v(vT)}, {s(sT0)}, {v(vT)}")
            a("s_waitcnt lgkmcnt(0)")
            for k in range(4):
                a(f"ds_read_b128 {v(vSrc+4*k,4)}, {v(vT)} offset:{XN + 16*k}")
        self.pro_total = S
        side = self.side_blocks()
        for _ in range(c["pre"]):
            self.kv_load()
        a(f"s_load_dword {s(sTag)}, {s(WSSRD,2)}, 0")
        if c["ctl2"]:
            a(f"s_lshr_b32 {s(sPgO)}, s2, 3\ns_mul_i32 {s(sPgO)}, {s(sPgO)}, 4352\ns_add_u32 {s(sPgO)}, {s(sPgO)}, {WS_PG}")
            a(f"s_load_dword {s(sBase)}, {s(WSSRD,2)}, {s(sPgO)}")
        small_loads()
        credit = 0.0
        def paced():
            if self.nxt >= c["flp"]:
                self.wait_for(("kv", self.nxt - c["flp"]))
            self.kv_load()
        for t in range(32):
            if t == c["ln_at"]:
                layernorm()
            if t >= c["side_at"] and (t - c["side_at"]) % c["side_step"] == 0 and side:
                side.pop(0)()
            self.vmem(f"buffer_load_dwordx4 a[{4*t}:{4*t+3}], {v(vWq)}, {s(WQSRD,4)}, {s(sWoff)} offen {c['wflags']}", ("wq", t))
            if t < 31:
                a(f"s_add_u32 {s(sWoff)}, {s(sWoff)}, 8192")
            credit += c["kvper"]
            while credit >= 1 and self.nxt < self.pro_total - c["post"]:
                paced(); credit -= 1
        while self.nxt < self.pro_total - c["post"]:
            paced()
        a(f"s_lshl_b32 {s(sWoff)}, {s(sH)}, 17\ns_lshl_b32 {s(sT1)}, {s(sW)}, 8\ns_add_u32 {s(sWoff)}, {s(sWoff)}, {s(sT1)}")
        a("s_waitcnt lgkmcnt(0)")
        self.stamp()
        gemv_waits = [min(63, len(self.vm) - 1 - self.vm.index(("wq", t))) for t in range(32)]
        a(f"s_call_b64 {s(LINK,2)}, L_gemv")
        self.stamp()
        a(f"s_lshl_b32 {s(sT0)}, {s(sW)}, 9\nv_add_u32 {v(vU)}, {s(sT0)}, {v(vAD)}")
        a(f"ds_write_b128 {v(vU)}, {v(vG,4)} offset:{QP}")
        while self.nxt < self.pro_total:
            self.kv_load()
        a(f"v_and_b32 {v(vT)}, 0xf0, {v(vL16)}\nv_lshlrev_b32 {v(vT)}, 1, {v(vT)}")
        a("s_waitcnt lgkmcnt(0)\ns_barrier")
        for w in range(4):
            for hf in range(2):
                dst = (vSrc + 8*w + 4*hf) if w < 2 else (vTmp + 8*(w-2) + 4*hf)
                a(f"ds_read_b128 {v(dst,4)}, {v(vT)} offset:{QP + 512*w + 16*hf}")
        a(f"s_add_u32 {s(sTag)}, {s(sTag)}, 1\ns_and_b32 {s(sTag)}, {s(sTag)}, 0xff")
        a("s_waitcnt lgkmcnt(0)")
        for k in range(8):
            a(f"v_add_f32 {v(vSrc+k)}, {v(vSrc+k)}, {v(vSrc+8+k)}\nv_add_f32 {v(vTmp+k)}, {v(vTmp+k)}, {v(vTmp+8+k)}")
        for k in range(8):
            a(f"v_add_f32 {v(vSrc+k)}, {v(vSrc+k)}, {v(vTmp+k)}")
        for k in range(4):
            a(f"v_cvt_pk_bf16_f32 {v(vQ+k)}, {v(vSrc+2*k)}, {v(vSrc+2*k+1)}")
        self.stamp()

        a(f"s_lshl_b32 {s(sT0)}, {s(sW)}, 14\nv_add_u32 {v(vLa)}, {s(sT0)}, {v(vL16)}")
        self.fill = []
        assert not side
        side = self.late_blocks()
        n = 0
        while True:
            self.kstep(n)
            if n >= c["wo_start"] and (n - c["wo_start"]) % c["wo_every"] == 0 and self.nwo < 32:
                self.wo_load()
            if side and n >= c["R0"] + 8:
                blk = side.pop(0)
                if blk:
                    blk()
            n += 1
            if n % R == 0:
                self.stamp()
                if n >= c["R0"] and self.nwo == 32 and not side and self.nxt == self.steady(n - 1):
                    break
        self.c["alpha"] = 0
        def kloop(m):
            sw = None
            if self.nxt <= n + R < self.steady(m):
                assert self.nxt == n + R
                sw = (f"s_cmp_eq_u32 {s(sCnt)}, 1\ns_cselect_b64 {s(KSRD,2)}, {s(VSRD,2)}, {s(KSRD,2)}\n"
                      f"s_cselect_b32 {s(sKV)}, {s(sVV)}, {s(sKV)}")
            self.kstep(m, sw)
        self.loop("L_loop1", n, (256 - n) // R, kloop, 0, c["ctl1"])
        for t in self.fill + self.dpp_ops(255) + self.post_ops(63):
            a(t)
        a(f"s_lshl_b32 {s(sT0)}, {s(sW)}, 14\nv_add_u32 {v(vLa)}, {s(sT0)}, {v(vL16)}")
        for ror in (8, 4):
            a(f"v_max_f32_dpp {v(vM)}, {v(vM)}, {v(vM)} row_ror:{ror} row_mask:0xf bank_mask:0xf")
        self.rowreduce([vM], vT, "max")
        a(f"s_lshl_b32 {s(sT0)}, {s(sW)}, 2\nv_mov_b32 {v(vP)}, {s(sT0)}")
        a(f"ds_write_b32 {v(vP)}, {v(vM)} offset:{MLW}\ns_waitcnt lgkmcnt(0)\ns_barrier")
        a(f"ds_read_b128 {v(vTmp,4)}, {v(vZero)} offset:{MLW}")
        a(f"ds_read_b128 {v(vSc,4)}, {v(vLa)} offset:{SC}\nv_add_u32 {v(vLa)}, 0x400, {v(vLa)}")
        a("s_waitcnt lgkmcnt(1)")
        a(f"v_max3_f32 {v(vM)}, {v(vTmp)}, {v(vTmp+1)}, {v(vTmp+2)}\nv_max_f32 {v(vM)}, {v(vM)}, {v(vTmp+3)}")
        a(f"v_mul_f32 {v(vML)}, {s(sLog2e)}, {v(vM)}\nv_or_b32 {v(vM)}, {v(vM)}, {v(vTagV)}\ns_waitcnt lgkmcnt(0)")
        for t in self.p_ops(0):
            a(t)
        assert c["ctl2"] or not c["ctl1"]
        self.fill = []
        a("s_nop 1")
        self.loop("L_loop2", 0, 16 - c["tail"] // R, self.vstep, 256, c["ctl2"])
        if c["tail"]:
            t0 = 256 - c["tail"]
            self.nxt, self.used = self.steady(255 + t0), 256 + t0
            if c["ctl2"]:
                a(f"s_cmp_lg_u32 {s(sState)}, 0\ns_cbranch_scc1 L_tail")
                self.kv_load()
                a("L_tail:")
            self.vm = [("kv", i) for i in range(self.used, self.nxt)]
            self.in_tail = True
            for k in range(t0, 256):
                self.vstep(k)
                if k == 252:
                    for ror in (8, 4):
                        a(f"v_add_f32_dpp {v(vL)}, {v(vL)}, {v(vL)} row_ror:{ror} row_mask:0xf bank_mask:0xf")
                    self.rowreduce([vL], vT)
                    a(f"ds_write_b32 {v(vP)}, {v(vL)} offset:{MLW + 16}")
                if k % R == R - 1:
                    self.stamp()

        assert c["tail"]
        a(f"ds_write_b128 {v(vU)}, {v(vO,4)} offset:{OP}")
        a("s_waitcnt lgkmcnt(0)\ns_barrier")
        op, lw = vSrc, vSrc + 8
        for w in range(4):
            a(f"ds_read_b64 {v(op+2*w,2)}, {v(vOa)} offset:{OP + 512*w}")
        a(f"ds_read_b128 {v(lw,4)}, {v(vZero)} offset:{MLW + 16}")
        o0, o1, hi, lo = vTmp + 8, vTmp + 9, vTmp + 10, vTmp + 11
        a("s_waitcnt lgkmcnt(3)")
        a(f"v_add_f32 {v(o0)}, {v(op)}, {v(op+2)}\nv_add_f32 {v(o1)}, {v(op+1)}, {v(op+3)}")
        a("s_waitcnt lgkmcnt(1)")
        a(f"v_add_f32 {v(op+4)}, {v(op+4)}, {v(op+6)}\nv_add_f32 {v(op+5)}, {v(op+5)}, {v(op+7)}")
        a(f"v_add_f32 {v(o0)}, {v(o0)}, {v(op+4)}\nv_add_f32 {v(o1)}, {v(o1)}, {v(op+5)}")
        a(f"v_cvt_pk_bf16_f32 {v(hi)}, {v(o0)}, {v(o1)}")
        a(f"ds_write_b32 {v(vHw)}, {v(hi)} offset:{OH}")
        self.unpack(vTmp + 12, vTmp + 13, hi)
        a(f"v_sub_f32 {v(o0)}, {v(o0)}, {v(vTmp+12)}\nv_sub_f32 {v(o1)}, {v(o1)}, {v(vTmp+13)}")
        a(f"v_cvt_pk_bf16_f32 {v(lo)}, {v(o0)}, {v(o1)}")
        a(f"ds_write_b32 {v(vHw)}, {v(lo)} offset:{OH+256}")
        a("s_waitcnt lgkmcnt(2)")
        a(f"v_add_f32 {v(vTmp)}, {v(lw)}, {v(lw+1)}\nv_add_f32 {v(vTmp+1)}, {v(lw+2)}, {v(lw+3)}")
        for k in range(4):
            a(f"ds_read_b128 {v(vSrc+4*k,4)}, {v(vHr)} offset:{OH + 16*k}")
        a(f"v_add_f32 {v(vTmp)}, {v(vTmp)}, {v(vTmp+1)}\nv_bfi_b32 {v(vM+1)}, {v(vFF)}, {v(vTagV)}, {v(vTmp)}")
        a(f"s_cmp_lg_u32 {s(sW)}, 3\ns_cbranch_scc1 L_norec\ns_mov_b64 exec, 1")
        if c.get("mlstore", 1):
            a(f"buffer_store_dwordx2 {v(vM,2)}, {v(vZero)}, {s(WSSRD,4)}, {s(sMo)} offen sc1")
        a("s_mov_b64 exec, -1\nL_norec:")
        a("s_waitcnt lgkmcnt(0)")
        self.stamp()
        a(f"s_call_b64 {s(LINK,2)}, L_gemv")
        if c["ystore"] == 2:
            for k in range(2):
                a(f"v_permlane32_swap_b32 {v(vG+k)}, {v(vG+2+k)}")
            for k in range(2):
                a(f"v_add_f32 {v(vG+k)}, {v(vG+k)}, {v(vG+2+k)}")
            for k in range(2):
                a(f"v_bfi_b32 {v(vG+k)}, {v(vFF)}, {v(vTagV)}, {v(vG+k)}")
            a(f"buffer_store_dwordx2 {v(vG,2)}, {v(vYs)}, {s(WSSRD,4)}, {s(sYo)} offen {c['yflags']}")
        else:
            for k in range(4):
                a(f"v_mov_b32 {v(vTmp+k)}, {v(vG+k)}")
            for k in range(4):
                a(f"v_permlane32_swap_b32 {v(vG+k)}, {v(vTmp+k)}")
            for k in range(4):
                a(f"v_add_f32 {v(vG+k)}, {v(vG+k)}, {v(vTmp+k)}")
            for k in range(4):
                a(f"v_bfi_b32 {v(vG+k)}, {v(vFF)}, {v(vTagV)}, {v(vG+k)}")
            a("s_mov_b32 exec_hi, 0")
            if c["ystore"] == 4:
                a(f"buffer_store_dwordx4 {v(vG,4)}, {v(vAD)}, {s(WSSRD,4)}, {s(sYo)} offen {c['yflags']}")
            a("s_mov_b32 exec_hi, -1")
        self.stamp()
        a(f"s_cmp_ge_u32 s2, {c['ncons']}\ns_cbranch_scc1 L_fin")

        Y, ML2, Bv = vRing, vRing + 16, vRing + 24
        cl, ml, e, lsum, acc, bad = vRing + 28, vRing + 44, vRing + 54, vRing + 58, vRing + 62, vRing + 66
        a(f"s_mov_b32 {s(sCnt)}, {c['spin']}\ns_mov_b32 {s(sWarm)}, 0\ns_mov_b32 {s(sCoef)}, 0")
        a(f"s_mov_b64 {s(sInvM,2)}, -1\ns_mov_b64 {s(sInvY,2)}, -1")
        def yloads():
            for i in range(4):
                a(f"buffer_load_dwordx4 {v(Y+4*i,4)}, {v(vYo)}, {s(WSSRD,4)}, {s(sYi+i)} offen sc1")
        if c["early_y"]:
            yloads()
        else:
            a(f"v_not_b32 {v(Y)}, {v(vTagV)}")
        a("L_poll:")
        a(f"s_mov_b64 exec, {s(sInvM,2)}")
        for i in range(4):
            a(f"buffer_load_dwordx2 {v(ML2+2*i,2)}, {v(vMo)}, {s(WSSRD,4)}, {s(sMi+i)} offen sc1")
        a(f"buffer_load_dword {v(Bv)}, {v(vCb)}, {s(WSSRD,4)}, {s(sBo)} offen sc1")
        a(f"s_andn2_b64 exec, {s(sInvY,2)}, {s(sInvM,2)}\ns_cbranch_execz L_noy")
        a("L_polly:")
        yloads()
        a(f"L_noy:\ns_mov_b64 exec, -1\ns_cmp_lg_u32 {s(sCoef)}, 0\ns_cbranch_scc1 L_y")
        a("s_waitcnt vmcnt(0)")
        for k in range(9):
            a(f"v_xor_b32 {v(ml+k)}, {v(vTagV)}, {v(ML2+k)}")
        a(f"v_or3_b32 {v(bad)}, {v(ml)}, {v(ml+1)}, {v(ml+2)}")
        for k in (3, 5, 7):
            a(f"v_or3_b32 {v(bad)}, {v(bad)}, {v(ml+k)}, {v(ml+k+1)}")
        a(f"v_and_b32 {v(bad)}, 0xff, {v(bad)}\nv_cmp_ne_u32 {s(sInvM,2)}, 0, {v(bad)}")
        if c["early_y"]:
            a(f"s_cmp_eq_u32 {s(sWarm)}, 0\ns_cbranch_scc1 L_coef\ns_cmp_lg_u64 {s(sInvM,2)}, 0\ns_cbranch_scc1 L_y")
        else:
            a(f"s_cmp_eq_u64 {s(sInvM,2)}, 0\ns_cbranch_scc1 L_all\ns_cmp_eq_u32 {s(sWarm)}, 0\ns_cbranch_scc1 L_coef\ns_branch L_y\nL_all:")
        a(f"s_mov_b64 exec, {s(sInvY,2)}\ns_cbranch_execz L_noy2")
        yloads()
        a("L_noy2:\ns_mov_b64 exec, -1")
        a(f"L_coef:\ns_cmp_eq_u64 {s(sInvM,2)}, 0\ns_cselect_b32 {s(sCoef)}, 1, 0")
        def over_splits(op, dst, src):
            for step, ror in enumerate((4, 8)):
                for i in range(4):
                    x = src + i if step == 0 else dst + i
                    a(f"v_{op}_f32_dpp {v(dst+i)}, {v(x)}, {v(x)} row_ror:{ror} row_mask:0xf bank_mask:0xf")
            for i in range(4):
                a(f"v_mov_b32 {v(acc+i)}, {v(dst+i)}")
            for i in range(4):
                a(f"v_permlane16_swap_b32 {v(dst+i)}, {v(acc+i)}")
            for i in range(4):
                a(f"v_{op}_f32 {v(dst+i)}, {v(dst+i)}, {v(acc+i)}")
        for i in range(4):
            a(f"v_mul_f32 {v(e+i)}, {s(sLog2e)}, {v(ml+2*i)}")
        over_splits("max", lsum, e)
        for i in range(4):
            a(f"v_sub_f32 {v(e+i)}, {v(e+i)}, {v(lsum+i)}")
        for i in range(4):
            a(f"v_exp_f32 {v(e+i)}, {v(e+i)}")
        for i in range(4):
            a(f"v_mul_f32 {v(lsum+i)}, {v(e+i)}, {v(ml+2*i+1)}")
        over_splits("add", lsum, lsum)
        for i in range(4):
            a(f"v_rcp_f32 {v(lsum+i)}, {v(lsum+i)}")
        for i in range(4):
            a(f"v_mul_f32 {v(e+i)}, {v(e+i)}, {v(lsum+i)}")
        a("L_y:\ns_waitcnt vmcnt(0)")
        for k in range(16):
            a(f"v_xor_b32 {v(cl+k)}, {v(vTagV)}, {v(Y+k)}")
        a(f"v_or3_b32 {v(bad)}, {v(cl)}, {v(cl+1)}, {v(cl+2)}\nv_or3_b32 {v(bad+1)}, {v(cl+3)}, {v(cl+4)}, {v(cl+5)}")
        for k in range(6, 16, 2):
            b = bad + ((k >> 1) & 1)
            a(f"v_or3_b32 {v(b)}, {v(b)}, {v(cl+k)}, {v(cl+k+1)}")
        a(f"v_bitop3_b32 {v(bad)}, {v(bad)}, {v(bad+1)}, {v(vFF)} bitop3:0xa8")
        a(f"v_cmp_ne_u32 {s(sInvY,2)}, 0, {v(bad)}")
        for k in range(4):
            a(f"v_mul_f32 {v(acc+k)}, {v(e)}, {v(cl+k)}")
        a(f"s_or_b64 {s(sInv,2)}, {s(sInvY,2)}, {s(sInvM,2)}\ns_cbranch_scc0 L_sum\ns_cmp_eq_u32 {s(sWarm)}, 0\ns_cbranch_scc1 L_sum")
        a("L_again:")
        a(f"s_sub_u32 {s(sCnt)}, {s(sCnt)}, 1\ns_cmp_eq_u32 {s(sCnt)}, 0\ns_cbranch_scc1 L_store")
        a(f"s_mov_b64 exec, {s(sInvY,2)}\ns_cmp_lg_u32 {s(sCoef)}, 0\ns_cbranch_scc1 L_polly")
        if c["nap"]:
            a(f"s_sleep {c['nap']}")
        a("s_branch L_poll")
        a(f"L_sum:\ns_mov_b32 {s(sWarm)}, 1")
        for i in range(1, 4):
            for k in range(4):
                a(f"v_fmac_f32 {v(acc+k)}, {v(e+i)}, {v(cl+4*i+k)}")
        for k in (0, 2):
            a(f"v_permlane32_swap_b32 {v(acc+k)}, {v(acc+k+1)}")
        for k in (0, 2):
            a(f"v_add_f32 {v(acc+k)}, {v(acc+k)}, {v(acc+k+1)}")
        a(f"v_permlane16_swap_b32 {v(acc)}, {v(acc+2)}\nv_add_f32 {v(acc)}, {v(acc)}, {v(acc+2)}")
        for ror in (8, 4):
            a(f"v_add_f32_dpp {v(acc)}, {v(acc)}, {v(acc)} row_ror:{ror} row_mask:0xf bank_mask:0xf")
        a(f"ds_write_b32 {v(vRw)}, {v(acc)} offset:{RED}")
        a(f"s_cmp_lg_u64 {s(sInv,2)}, 0\ns_cbranch_scc1 L_again")
        a("L_store:\ns_mov_b64 exec, -1\ns_waitcnt lgkmcnt(0)\ns_barrier")
        a(f"s_cmp_lg_u32 {s(sW)}, 0\ns_cbranch_scc1 L_fin")
        a(f"ds_read_b128 {v(acc,4)}, {v(vRr)} offset:{RED}")
        a("s_mov_b32 exec_lo, 0xf000f\ns_mov_b32 exec_hi, 0xf000f\ns_waitcnt lgkmcnt(0)")
        a(f"v_add_f32 {v(acc)}, {v(acc)}, {v(acc+1)}\nv_add_f32 {v(acc+2)}, {v(acc+2)}, {v(acc+3)}\nv_add_f32 {v(acc)}, {v(acc)}, {v(acc+2)}")
        self.round1(acc)
        a(f"v_add_f32 {v(acc)}, {v(acc)}, {v(vXf)}")
        self.round1(acc)
        a(f"v_add_f32 {v(acc)}, {v(acc)}, {v(ml+8)}\nv_cvt_pk_bf16_f32 {v(acc)}, {v(acc)}, {v(acc)}")
        a(f"buffer_store_short {v(acc)}, {v(vCo)}, {s(OUTSRD,4)}, {s(sOo)} offen {c['outflags']}")
        a("s_mov_b64 exec, 1")
        a("s_cmp_lg_u32 s2, 0\ns_cbranch_scc1 L_fin0")
        a(f"buffer_store_dword {v(vTagV)}, {v(vZero)}, {s(WSSRD,4)}, 0 offen")
        a("L_fin0:\ns_mov_b64 exec, -1")
        a("L_fin:")
        if c["diag"]:
            self.stamp()
            a(f"s_getreg_b32 {s(sT0)}, hwreg(HW_REG_XCC_ID)\ns_mov_b32 m0, 63\nv_writelane_b32 {v(vStamp)}, {s(sT0)}, m0")
            a(f"s_mov_b32 m0, 62\nv_writelane_b32 {v(vStamp)}, {s(sStampN)}, m0")
            a(f"s_lshl_b32 {s(sT0)}, s2, 10\ns_add_u32 {s(sT0)}, {s(sT0)}, {WS_DIAG}\nv_lshlrev_b32 {v(vT)}, 2, {v(vTid)}")
            a(f"buffer_store_dword {v(vStamp)}, {v(vT)}, {s(WSSRD,4)}, {s(sT0)} offen")
        a("L_done:\ns_endpgm")

        a("L_gemv:")
        def perms(t):
            sel = vSel1 if t & 1 else vSel0
            A = vA if t & 1 else vO
            for k in range(4):
                a(f"v_perm_b32 {v(A+k)}, {v(vSrc+t//2)}, {v(vSrc+t//2)}, {v(sel+k)}")
        perms(0)
        for t in range(32):
            if t < 31:
                perms(t + 1)
            if t == 0 or t >= 32 - c["gw"]:
                a(f"s_waitcnt vmcnt({gemv_waits[max(t, 31 - c['gw'])]})")
            a(f"v_mfma_f32_16x16x32_bf16 {v(vG,4)}, {v(vA if t & 1 else vO,4)}, a[{4*t}:{4*t+3}], " + ("0" if t == 0 else v(vG, 4)))
        for k in range(4):
            a(f"v_mov_b32 {v(vO+k)}, 0")
        a(f"s_nop 7\ns_setpc_b64 {s(LINK,2)}")

        return self.a.finish()

HEADER = open("parallel_sum__mha_block_cached__mixer_token_mlp__decode.s.ref").read().split("; Override launch")[0]

def make(**kw):
    g = Gen(**kw)
    body = g.build()
    nv = vRing + max(4 * g.c["R0"], 72)
    acc = (nv + 3) // 4 * 4
    return (HEADER + f"; @launch grid=(256,1,1) block=(256,1,1) lds={LDS_SIZE}\n"
            + '.amdgcn_target "amdgcn-amd-amdhsa--gfx950"\n.text\n'
            + f".globl {NAME}\n.p2align 8\n.type {NAME},@function\n" + body
            + f""".section .rodata,"a"
.p2align 6
.amdhsa_kernel {NAME}
  .amdhsa_next_free_vgpr {acc + 128}
  .amdhsa_next_free_sgpr 102
  .amdhsa_accum_offset {acc}
  .amdhsa_group_segment_fixed_size 0
  .amdhsa_kernarg_size 104
  .amdhsa_user_sgpr_count 2
  .amdhsa_user_sgpr_kernarg_segment_ptr 1
  .amdhsa_system_sgpr_workgroup_id_x 1
  .amdhsa_float_denorm_mode_32 3
.end_amdhsa_kernel
""")

if __name__ == "__main__":
    out = sys.argv[1]
    kw = {}
    for p in sys.argv[2:]:
        k, val = p.split("=", 1)
        try:
            val = int(val)
        except ValueError:
            try:
                val = float(val)
            except ValueError:
                val = val.replace("+", " ")
        kw[k] = val
    open(out, "w").write(make(**kw))
```

```python
import struct, sys, math
from asmlib import Asm

NAME = "parallel_sum__mha_block_cached__mixer_token_mlp__decode_kernel"

def fbits(x):
    return "0x%08x" % struct.unpack("<I", struct.pack("<f", x))[0]

LOG2E = 1.4426950408889634
C2 = -2.0 * math.sqrt(2.0 / math.pi) * LOG2E
C1 = C2 * 0.044715

XN, QP, OP, MLW, BP, OH, RED, BB, DUM, SC = 0, 4096, 6144, 8192, 8256, 8448, 10496, 11520, 11648, 12288
LDS_SIZE = SC + 4 * 16384 + 1024
WS_B, WS_Y, WS_ML = 8192, 65536, 65536 + 256 * 2048
WS_PG = WS_ML + 16 * 4352
WS_SIZE = WS_PG + 32 * 4352 + 300000
WS_DIAG = 1 << 20

vTid, vL16, vWq, vWo = 0, 1, 2, 3
vO, vA, vQ, vMask, vSel0, vSel1 = 4, 8, 12, 16, 20, 24
vM, vML, vL, vS, vT, vP, vU, vAD = 28, 29, 30, 31, 32, 33, 34, 35
vG, vSrc, vX, vW1, vB1, vW2 = 36, 40, 56, 60, 64, 68
vB2, vH0, vH1, vAcc0, vAcc1, vLane, vXc, vStamp = 72, 73, 74, 75, 76, 77, 78, 79
vTmp, vRing = 80, 96
vS2, vPk, vPf, vPp, vSc, vLa = vSrc, vSrc + 2, vSrc + 4, vSrc + 6, vSrc + 8, vSrc + 12
vOa, vHw, vHr, vZero, vTagV, vFF, vYo, vMo, vXf, vCo, vCb, vYs, vRw, vRr, vPo, vPoll, vPg, vPw = 56, 57, 58, 59, 60, 61, 62, 63, 64, 65, 66, 67, 68, 69, 70, 71, 73, 74
sW, sH, sSp, sR, sKV, sCnt, sTag, sWoff, sLog2e, sT0, sT1 = 3, 50, 51, 52, 53, 54, 55, 56, 57, 58, 59
sInv, sRL, sHiM, sYo, sYo2, sMo, sStampN, sVV = 60, 62, 66, 67, 68, 69, 70, 71
sPh, sAd = 100, 101
sYi, sBo, sOo, sWarm, sCoef, sInvM, sInvY, sMi = 62, 76, 77, 78, 79, 80, 82, 84
sPgO, sBase, sAt, sWant, sState = 72, 73, 90, 91, 92
sPeer = 24
KSRD, VSRD, WQSRD, WOSRD, W1SRD, B1SRD, W2SRD, B2SRD, OUTSRD, WSSRD, XSRD = 8, 12, 16, 20, 24, 28, 32, 36, 40, 44, 4
LINK = 48
FLAG = BB
ARG = 76

def v(i, n=1):
    return f"v{i}" if n == 1 else f"v[{i}:{i+n-1}]"
def s(i, n=1):
    return f"s{i}" if n == 1 else f"s[{i}:{i+n-1}]"

DEFAULT = dict(R0=40, S=40, FL=5, alpha=0.25, pre=6, kvper=0.9, post=6, flp=6, ln_at=4, side_at=8, side_step=2,
               wo_start=32, wo_every=2, gran=1, tail=16, tail_rate=2, tail_max=40, gw=4, ncons=32, outflags="", nap=0, mlstride=4352, early_y=0, ctl1=0, ctl2=0, thr=4, cmode=1, cwave=0, cst=1, cld=1, cfl="sc1", cw=0, cevery=1, clast=99, pretouch=0, frac=1, fper=4, ystore=4, yflags="sc1", wflags="nt", kvflags="nt", diag=0, spin=1 << 20, hmap="l", phase="gi")
R = 16

class Gen:
    def __init__(self, **kw):
        self.c = dict(DEFAULT); self.c.update(kw)
        self.a = Asm()
        self.vm = []
        self.stubs = []
        self.nxt = 0
        self.used = 0
        self.nwo = 0
        self.in_tail = False
        self.mute = False
        self.free_slot = {}

    def vmem(self, text, tag):
        self.a(text); self.vm.append(tag)
    def wait_for(self, tag):
        n = len(self.vm) - 1 - self.vm.index(tag)
        self.a(f"s_waitcnt vmcnt({min(n, 63)})")

    def stamp(self):
        if not self.c["diag"]:
            return
        a = self.a
        a(f"s_memrealtime s[74:75]\ns_waitcnt lgkmcnt(0)\ns_mov_b32 m0, {s(sStampN)}\nv_writelane_b32 {v(vStamp)}, s74, m0\ns_add_u32 {s(sStampN)}, {s(sStampN)}, 1")

    def slot(self, n):
        if n in self.free_slot:
            return vRing + 4 * self.free_slot[n]
        return vRing + 4 * (n if n < self.c["R0"] else n % R)
    def can(self):
        n, R0 = self.nxt, self.c["R0"]
        if self.in_tail:
            busy = {self.slot(m) for m in range(self.used, n)}
            for k in range(R0):
                if vRing + 4 * k not in busy:
                    self.free_slot[n] = k
                    return True
            return False
        prev = -1 if n < R0 else (n - R if n - R >= R0 else n % R)
        return prev < self.used
    def steady(self, n):
        g = self.c["gran"]
        return -(-(n + 1 + self.c["FL"]) // g) * g + (1 if n % self.c["fper"] < self.c["frac"] else 0)
    def kv_load(self, late_add=False):
        assert self.can()
        n = self.nxt
        self.a(f"s_xor_b32 {s(sAd)}, {s(sKV)}, {s(sPh)}")
        self.vmem(f"buffer_load_dwordx4 {v(self.slot(n),4)}, {v(vL16)}, {s(KSRD,4)}, {s(sAd)} offen {self.c['kvflags']}", ("kv", n))
        self.nxt += 1
        add = f"s_add_u32 {s(sKV)}, {s(sKV)}, 4096"
        if late_add:
            return add
        self.a(add)
    def issue_at(self, n):
        c = self.c
        if self.mute:
            return []
        want = max(self.steady(n), self.pro_total + int((n + 1) * c["alpha"]))
        if self.in_tail:
            want = min(512, max(want, min(self.nxt + c["tail_rate"], n + 1 + c["tail_max"])))
        add = None
        while self.nxt < want and (self.can() or self.nxt < self.steady(n)):
            if add:
                self.a(add)
            add = self.kv_load(late_add=True)
        return [add] if add else []

    def wo_load(self):
        t = self.nwo
        if t % 4 == 0 and t:
            self.a(f"s_add_u32 {s(sWoff)}, {s(sWoff)}, 4096")
        self.vmem(f"buffer_load_dwordx4 a[{4*t}:{4*t+3}], {v(vWo)}, {s(WOSRD,4)}, {s(sWoff)} offen offset:{(t%4)*1024} {self.c['wflags']}", ("wo", t))
        self.nwo += 1

    def allreduce(self, regs, tmp, op="add"):
        a = self.a
        for ror in (8, 4, 2, 1):
            for r in regs:
                a(f"v_{op}_f32_dpp {v(r)}, {v(r)}, {v(r)} row_ror:{ror} row_mask:0xf bank_mask:0xf")
        self.rowreduce(regs, tmp, op)
    def rowreduce(self, regs, tmp, op="add"):
        a = self.a
        for sw in (16, 32):
            for k, r in enumerate(regs):
                a(f"v_mov_b32 {v(tmp+k)}, {v(r)}")
            for k, r in enumerate(regs):
                a(f"v_permlane{sw}_swap_b32 {v(r)}, {v(tmp+k)}")
            for k, r in enumerate(regs):
                a(f"v_{op}_f32 {v(r)}, {v(r)}, {v(tmp+k)}")
    def unpack(self, dlo, dhi, src):
        self.a(f"v_lshlrev_b32 {v(dlo)}, 16, {v(src)}\nv_and_b32 {v(dhi)}, {s(sHiM)}, {v(src)}")
    def round1(self, r):
        self.a(f"v_cvt_pk_bf16_f32 {v(r)}, {v(r)}, {v(r)}\nv_lshlrev_b32 {v(r)}, 16, {v(r)}")

    def ln_sum(self, f, acc, tmp):
        a = self.a
        for k in range(4):
            self.unpack(f + 2*k, f + 2*k + 1, vX + k)
        a(f"v_add_f32 {v(acc)}, {v(f)}, {v(f+1)}\nv_add_f32 {v(tmp)}, {v(f+2)}, {v(f+3)}")
        a(f"v_add_f32 {v(acc)}, {v(acc)}, {v(tmp)}\nv_add_f32 {v(tmp)}, {v(f+4)}, {v(f+5)}")
        a(f"v_add_f32 {v(acc)}, {v(acc)}, {v(tmp)}\nv_add_f32 {v(tmp)}, {v(f+6)}, {v(f+7)}")
        a(f"v_add_f32 {v(acc)}, {v(acc)}, {v(tmp)}")
        self.allreduce([acc], tmp)
        a(f"v_mul_f32 {v(acc)}, {fbits(1/512)}, {v(acc)}")
    def ln_var(self, f, mean, sd, rs, tmp):
        a = self.a
        for k in range(8):
            a(f"v_sub_f32 {v(tmp)}, {v(f+k)}, {v(mean)}")
            a(f"v_mul_f32 {v(sd)}, {v(tmp)}, {v(tmp)}" if k == 0 else f"v_fmac_f32 {v(sd)}, {v(tmp)}, {v(tmp)}")
        self.allreduce([sd], tmp)
        a(f"v_mul_f32 {v(sd)}, {fbits(1/512)}, {v(sd)}")
        self.round1(mean)
        self.round1(sd)
        a(f"v_add_f32 {v(sd)}, {fbits(1e-5)}, {v(sd)}")
        self.round1(sd)
        a(f"v_sqrt_f32 {v(sd)}, {v(sd)}")
        self.round1(sd)
        a(f"v_rcp_f32 {v(rs)}, {v(sd)}")
    def ln_pair(self, dst, f0, f1, mean, sd, rs, t):
        a = self.a
        a(f"v_sub_f32 {v(f0)}, {v(f0)}, {v(mean)}\nv_sub_f32 {v(f1)}, {v(f1)}, {v(mean)}")
        a(f"v_cvt_pk_bf16_f32 {v(t)}, {v(f0)}, {v(f1)}")
        self.unpack(f0, f1, t)
        for f in (f0, f1):
            a(f"v_mul_f32 {v(t)}, {v(f)}, {v(rs)}")
            a(f"v_fma_f32 {v(f)}, -{v(t)}, {v(sd)}, {v(f)}")
            a(f"v_fma_f32 {v(f)}, {v(f)}, {v(rs)}, {v(t)}")
        a(f"v_cvt_pk_bf16_f32 {v(dst)}, {v(f0)}, {v(f1)}")

    def side_blocks(self):
        a = self.a
        f, mean, sd, rs, t = vTmp, vTmp + 8, vTmp + 9, vTmp + 10, vTmp + 11
        def b_sum():
            a(f"s_lshl_b32 {s(sT0)}, {s(sR)}, 2\ns_lshl_b32 {s(sT1)}, {s(sW)}, 10\ns_add_u32 {s(sT0)}, {s(sT0)}, {s(sT1)}")
            a(f"v_mov_b32 {v(vH0)}, {s(sT0)}\nds_read_b32 {v(vH1)}, {v(vH0)} offset:{XN}")
            self.ln_sum(f, mean, t)
        def b_var():
            self.ln_var(f, mean, sd, rs, t)
            a("s_waitcnt lgkmcnt(0)")
            self.unpack(f, f + 1, vH1)
            self.ln_pair(vH1, f, f + 1, mean, sd, rs, t)
            a(f"v_lshlrev_b32 {v(vH0)}, 16, {v(vH1)}\nv_and_b32 {v(vH1)}, {s(sHiM)}, {v(vH1)}")
            a(f"v_mov_b32 {v(vAcc0)}, 0\nv_mov_b32 {v(vAcc1)}, 0")
        def piece(k, col):
            def run():
                wl, wh, bl, bh, u0, u1, t0, t1 = range(vTmp, vTmp + 8)
                if k == 0 and col == 0:
                    self.wait_for("w2")
                if col == 0:
                    self.unpack(wl, wh, vW1 + k)
                    self.unpack(bl, bh, vB1 + k)
                h = vH1 if col else vH0
                acc = vAcc1 if col else vAcc0
                a(f"v_mul_f32 {v(u0)}, {v(h)}, {v(wl)}\nv_mul_f32 {v(u1)}, {v(h)}, {v(wh)}")
                a(f"v_cvt_pk_bf16_f32 {v(t0)}, {v(u0)}, {v(u1)}")
                self.unpack(u0, u1, t0)
                a(f"v_add_f32 {v(u0)}, {v(u0)}, {v(bl)}\nv_add_f32 {v(u1)}, {v(u1)}, {v(bh)}")
                a(f"v_cvt_pk_bf16_f32 {v(t0)}, {v(u0)}, {v(u1)}")
                self.unpack(u0, u1, t0)
                a(f"v_mul_f32 {v(t0)}, {v(u0)}, {v(u0)}\nv_mul_f32 {v(t1)}, {v(u1)}, {v(u1)}")
                a(f"v_mov_b32 {v(vTmp+8)}, {fbits(C1)}")
                a(f"v_fmaak_f32 {v(t0)}, {v(t0)}, {v(vTmp+8)}, {fbits(C2)}\nv_fmaak_f32 {v(t1)}, {v(t1)}, {v(vTmp+8)}, {fbits(C2)}")
                a(f"v_mul_f32 {v(t0)}, {v(t0)}, {v(u0)}\nv_mul_f32 {v(t1)}, {v(t1)}, {v(u1)}")
                a(f"v_exp_f32 {v(t0)}, {v(t0)}\nv_exp_f32 {v(t1)}, {v(t1)}")
                a(f"v_add_f32 {v(t0)}, 1.0, {v(t0)}\nv_add_f32 {v(t1)}, 1.0, {v(t1)}")
                a(f"v_rcp_f32 {v(t0)}, {v(t0)}\nv_rcp_f32 {v(t1)}, {v(t1)}")
                a(f"v_mul_f32 {v(u0)}, {v(u0)}, {v(t0)}\nv_mul_f32 {v(u1)}, {v(u1)}, {v(t1)}")
                a(f"v_cvt_pk_bf16_f32 {v(t0)}, {v(u0)}, {v(u1)}")
                a(f"v_dot2_f32_bf16 {v(acc)}, {v(t0)}, {v(vW2+k)}, {v(acc)}")
            return run
        def b_red():
            self.allreduce([vAcc0, vAcc1], vTmp)
            a(f"s_lshl_b32 {s(sT0)}, {s(sW)}, 3\nv_mov_b32 {v(vTmp)}, {s(sT0)}")
            a(f"v_mov_b32 {v(vTmp+2)}, {v(vAcc0)}\nv_mov_b32 {v(vTmp+3)}, {v(vAcc1)}")
            a(f"ds_write_b64 {v(vTmp)}, {v(vTmp+2,2)} offset:{BP}")
        return [b_sum, b_var] + [piece(k, c) for k in range(4) for c in range(2)] + [b_red]

    def late_blocks(self):
        a = self.a
        bp = vTmp
        def b_read():
            a(f"v_mov_b32 {v(vZero)}, 0\nv_mov_b32 {v(vTagV)}, {s(sTag)}\nv_mov_b32 {v(vFF)}, 0xff")
            a(f"ds_read_b128 {v(bp,4)}, {v(vZero)} offset:{BP}\nds_read_b128 {v(bp+4,4)}, {v(vZero)} offset:{BP+16}")
            a(f"s_lshl_b32 {s(sOo)}, s2, 5\nv_bfe_u32 {v(vCo)}, {v(vLane)}, 5, 1\nv_bfe_u32 {v(vT)}, {v(vLane)}, 4, 1")
            a(f"v_lshl_add_u32 {v(vCo)}, {v(vT)}, 1, {v(vCo)}\nv_and_b32 {v(vT)}, 3, {v(vLane)}\nv_lshl_add_u32 {v(vCo)}, {v(vT)}, 2, {v(vCo)}")
            a(f"v_lshlrev_b32 {v(vRr)}, 4, {v(vCo)}\ns_lshl_b32 {s(sT0)}, {s(sW)}, 2\nv_add_u32 {v(vRw)}, {s(sT0)}, {v(vRr)}")
            a(f"v_lshlrev_b32 {v(vCb)}, 2, {v(vCo)}\nv_lshlrev_b32 {v(vCo)}, 1, {v(vCo)}")
            self.vmem(f"buffer_load_ushort {v(vXf)}, {v(vCo)}, {s(XSRD,4)}, {s(sOo)} offen", "xc")
        def b_pub():
            a(f"v_lshlrev_b32 {v(vB2)}, 16, {v(vB2)}\ns_waitcnt lgkmcnt(0)")
            for j in range(2):
                a(f"v_add_f32 {v(bp+j)}, {v(bp+j)}, {v(bp+2+j)}\nv_add_f32 {v(bp+4+j)}, {v(bp+4+j)}, {v(bp+6+j)}")
            for j in range(2):
                a(f"v_add_f32 {v(bp+j)}, {v(bp+j)}, {v(bp+4+j)}")
            for j in range(2):
                self.round1(bp + j)
                a(f"v_add_f32 {v(bp+j)}, {v(bp+j)}, {v(vB2)}")
                self.round1(bp + j)
                a(f"v_or_b32 {v(bp+j)}, {v(bp+j)}, {v(vTagV)}")
            a(f"s_lshl_b32 {s(sT0)}, {s(sR)}, 3\ns_add_u32 {s(sT0)}, {s(sT0)}, {WS_B}")
            a(f"s_cmp_lg_u32 {s(sW)}, 0\ns_cbranch_scc1 L_nob\ns_mov_b64 exec, 1")
            a(f"buffer_store_dwordx2 {v(bp,2)}, {v(vZero)}, {s(WSSRD,4)}, {s(sT0)} offen sc1")
            a("s_mov_b64 exec, -1\nL_nob:")
        def addr():
            a(f"v_lshlrev_b32 {v(vOa)}, 3, {v(vLane)}\ns_lshl_b32 {s(sT0)}, {s(sW)}, 9")
            a(f"v_lshl_add_u32 {v(vHw)}, {v(vLane)}, 2, {s(sT0)}")
            a(f"v_and_b32 {v(vT)}, 8, {v(vLane)}\nv_lshlrev_b32 {v(vT)}, 5, {v(vT)}\nv_and_b32 {v(vHr)}, 0x30, {v(vLane)}")
            a(f"v_lshl_add_u32 {v(vHr)}, {v(vHr)}, 2, {v(vT)}\nv_add_u32 {v(vHr)}, {s(sT0)}, {v(vHr)}")
            a(f"s_lshl_b32 {s(sYo)}, {s(sR)}, 11\ns_add_u32 {s(sYo)}, {s(sYo)}, {s(sT0)}\ns_add_u32 {s(sYo)}, {s(sYo)}, {WS_Y}")
            ms = self.c["mlstride"]
            a(f"s_lshr_b32 {s(sMo)}, {s(sR)}, 4\ns_mul_i32 {s(sMo)}, {s(sMo)}, {ms}\ns_and_b32 {s(sT1)}, {s(sR)}, 15\ns_lshl_b32 {s(sT1)}, {s(sT1)}, 3")
            a(f"s_add_u32 {s(sMo)}, {s(sMo)}, {s(sT1)}\ns_add_u32 {s(sMo)}, {s(sMo)}, {WS_ML}")
            a(f"v_lshrrev_b32 {v(vT)}, 2, {v(vLane)}\nv_lshlrev_b32 {v(vMo)}, 3, {v(vT)}\nv_and_b32 {v(vYo)}, 3, {v(vLane)}")
            a(f"v_lshlrev_b32 {v(vYo)}, 4, {v(vYo)}\nv_lshl_add_u32 {v(vYo)}, {v(vT)}, 11, {v(vYo)}")
            a(f"v_bfe_u32 {v(vT)}, {v(vLane)}, 5, 1\nv_lshl_add_u32 {v(vYs)}, {v(vT)}, 3, {v(vAD)}")
            a(f"s_mul_i32 {s(sMi)}, {s(sW)}, {4 * ms}\ns_add_u32 {s(sMi)}, {s(sMi)}, {WS_ML}")
            a(f"s_lshl_b32 {s(sBo)}, s2, 6\ns_lshl_b32 {s(sYi)}, {s(sW)}, 17\ns_add_u32 {s(sYi)}, {s(sYi)}, {s(sBo)}")
            a(f"s_add_u32 {s(sYi)}, {s(sYi)}, {WS_Y}\ns_add_u32 {s(sBo)}, {s(sBo)}, {WS_B}")
            for i in range(1, 4):
                a(f"s_add_u32 {s(sYi+i)}, {s(sYi+i-1)}, 0x8000\ns_add_u32 {s(sMi+i)}, {s(sMi+i-1)}, {ms}")
        def pace():
            a(f"s_cmp_eq_u32 {s(sW)}, 0\ns_cselect_b32 {s(sT1)}, 0, {DUM - FLAG}\nv_mov_b32 {v(vPw)}, {s(sT1)}")
            a(f"s_mov_b32 {s(sState)}, 0\nv_mov_b32 {v(vPoll)}, 0\nds_write_b32 {v(vPw)}, {v(vZero)} offset:{FLAG}")
            if self.c["cmode"] == 2:
                a(f"s_and_b32 {s(sT0)}, s2, 7\ns_lshl_b32 {s(sT0)}, {s(sT0)}, 2\ns_cmp_eq_u32 {s(sW)}, {self.c['cwave']}\ns_cselect_b32 {s(sT1)}, {s(sT0)}, 0x7ff00000")
                a(f"s_cselect_b32 {s(sAt)}, 0, 0x7ff00000\nv_add_u32 {v(vPo)}, {s(sAt)}, {v(vL16)}\ns_mul_i32 {s(sAt)}, s2, 3456\ns_add_u32 {s(sAt)}, {s(sAt)}, {1 << 21}")
                a(f"v_mov_b32 {v(vPw)}, {s(sT1)}\ns_mov_b32 {s(sBase)}, {s(sTag)}\ns_mov_b32 {s(sWant)}, 0")
        def touch():
            self.srd(VSRD, 1 << 20)
            a("s_mov_b64 exec, 1")
            self.vmem(f"buffer_load_dword {v(vTmp+12)}, {v(vZero)}, {s(VSRD,4)}, {s(sVV)} offen nt", "t0")
            self.vmem(f"buffer_load_dword {v(vTmp+13)}, {v(vZero)}, {s(WSSRD,4)}, {s(sYo)} offen nt", "t1")
            self.vmem(f"buffer_load_dword {v(vTmp+14)}, {v(vZero)}, {s(OUTSRD,4)}, 0 offen nt", "t2")
            a("s_mov_b64 exec, -1")
        def xcol():
            self.wait_for("xc")
            a(f"v_lshlrev_b32 {v(vXf)}, 16, {v(vXf)}")
        return [b_read, addr, b_pub, pace, touch if self.c['pretouch'] else None, None, None, None, xcol]

    def post_ops(self, g):
        pk = vPk + (g & 1)
        return [f"v_cvt_pk_bf16_f32 {v(pk)}, {v(pk)}, {v(pk)}", f"v_lshlrev_b32 {v(pk)}, 16, {v(pk)}",
                f"v_mul_f32 {v(pk)}, {fbits(128 ** -0.5)}, {v(pk)}",
                f"v_cvt_pk_bf16_f32 {v(pk)}, {v(pk)}, {v(pk)}", f"v_lshlrev_b32 {v(pk)}, 16, {v(pk)}",
                f"v_max_f32 {v(vM)}, {v(vM)}, {v(pk)}",
                f"ds_write_b32 {v(vLa)}, {v(pk)} offset:{SC + 4 * (g & 3)}"] + ([f"v_add_u32 {v(vLa)}, 0x400, {v(vLa)}"] if g & 3 == 3 else [])
    def dpp_ops(self, m):
        S = vS2 + (m & 1)
        ops = [f"v_add_f32_dpp {v(S)}, {v(S)}, {v(S)} row_ror:{r} row_mask:0xf bank_mask:0xf" for r in (8, 4, 2)]
        return ops + [f"v_add_f32_dpp {v(vPk + ((m >> 2) & 1))}, {v(S)}, {v(S)} row_ror:1 row_mask:0xf bank_mask:{hex(1 << (m & 3))}"]
    def kstep(self, m, pre=None):
        a = self.a
        K = self.slot(m); S = vS2 + (m & 1)
        self.wait_for(("kv", m))
        if pre:
            a(pre)
        fill = self.issue_at(m) + self.fill[:2]
        del self.fill[:2]
        dpp = self.dpp_ops(m - 1) if m else []
        for k in range(4):
            a(f"v_dot2_f32_bf16 {v(S)}, {v(K+k)}, {v(vQ+k)}, " + ("0" if k == 0 else v(S)))
            if k and fill:
                a(fill.pop(0))
            if dpp:
                a(dpp[k])
        assert not fill
        self.used = m + 1
        if m and (m - 1) & 3 == 3:
            self.fill += self.post_ops((m - 1) >> 2)

    def p_ops(self, g):
        return [f"v_fma_f32 {v(vT)}, {v(vSc + (g & 3))}, {s(sLog2e)}, -{v(vML)}", f"v_exp_f32 {v(vPf + (g & 1))}, {v(vT)}",
                f"v_cvt_pk_bf16_f32 {v(vPp + (g & 1))}, {v(vPf + (g & 1))}, {v(vPf + (g & 1))}"]
    def vstep(self, n):
        a = self.a
        g, q = n >> 2, n & 3
        nxt = self.p_ops(g + 1)
        if q == 0:
            a(f"v_add_f32 {v(vL)}, {v(vL)}, {v(vPf + (g & 1))}")
        if self.in_tail and g == 63:
            nxt = ["", "", ""]
        if q == 1:
            if g & 3 == 3 and nxt[0]:
                a("s_waitcnt lgkmcnt(0)")
            a(nxt[0]); a(nxt[1])
        if q == 2:
            a(nxt[2])
            if g & 3 == 2 and not (self.in_tail and g == 62):
                a(f"ds_read_b128 {v(vSc,4)}, {v(vLa)} offset:{SC}\nv_add_u32 {v(vLa)}, 0x400, {v(vLa)}")
        for k in range(4):
            a(f"v_and_b32_dpp {v(vA+k)}, {v(vPp + (g & 1))}, {v(vMask+k)} row_newbcast:{4*q} row_mask:0xf bank_mask:0xf")
        self.wait_for(("kv", 256 + n))
        for t in self.issue_at(256 + n):
            a(t)
        a(f"v_mfma_f32_16x16x32_bf16 {v(vO,4)}, {v(vA,4)}, {v(self.slot(256 + n),4)}, {v(vO,4)}")
        self.used = 256 + n + 1

    def loop(self, name, n, trips, step, base, ctl):
        a, c = self.a, self.c
        FL = c["FL"]
        fill0 = list(self.fill)
        def body(tag, vm):
            self.vm, self.nxt, self.used, self.fill = list(vm), base + n + sum(1 for t in vm if t[0] == 'kv'), base + n, list(fill0)
            for k in range(R):
                step(n + k)
                if k == 0:
                    a(f"{name}_{tag}1:")
                if ctl and c["cmode"] == 2 and k == 13:
                    a(f"s_waitcnt lgkmcnt(0)\ns_mov_b32 {s(sT0)}, 0")
                    for j in range(8):
                        a(f"s_cmp_eq_u32 {s(sPeer+j)}, {s(sBase)}\ns_addc_u32 {s(sT0)}, {s(sT0)}, 0")
                    a(f"s_cmp_ge_u32 {s(sT0)}, {c['thr']}\ns_cselect_b32 {s(sT0)}, 1, 0")
                    if c["cevery"] > 1 or c["clast"] < trips:
                        a(f"s_cmp_lg_u32 {s(sAt)}, 0\ns_cselect_b32 {s(sWant)}, {s(sT0)}, {s(sWant)}")
                    else:
                        a(f"s_mov_b32 {s(sWant)}, {s(sT0)}")
                if ctl and c["cmode"] == 1 and k == 13:
                    a(f"s_waitcnt lgkmcnt(0)\ns_sub_u32 {s(sT0)}, {s(sAt)}, {s(sBase)}\ns_add_u32 {s(sBase)}, {s(sBase)}, 8")
                    a(f"s_cmp_ge_i32 {s(sT0)}, {c['thr']}\ns_cselect_b32 {s(sT0)}, 1, 0\nv_mov_b32 {v(vPg)}, {s(sT0)}\nds_write_b32 {v(vPw)}, {v(vPg)} offset:{FLAG}")
                if ctl and c['cmode'] == 1 and k == 15:
                    a(f"ds_read_b32 {v(vPoll)}, {v(vZero)} offset:{FLAG}")
            assert self.fill == fill0
            self.stamp()
            a(f"s_sub_u32 {s(sCnt)}, {s(sCnt)}, 1\ns_cmp_lg_u32 {s(sCnt)}, 0")
        kv = lambda lo, hi: [("kv", base + n + i) for i in range(lo, hi)]
        a(f"s_mov_b32 {s(sCnt)}, {trips}\n{name}:")
        if not ctl:
            body("lo", kv(0, self.steady(base + n - 1) - base - n))
            a(f"s_cbranch_scc1 {name}")
            return
        assert c["gran"] == 1 and c["frac"] == 0
        extra = []
        if c["cmode"] == 1:
            a(f"s_waitcnt lgkmcnt(0)\nv_readfirstlane_b32 {s(sWant)}, {v(vPoll)}")
            a(f"s_mov_b32 {s(sAt)}, 1\ns_cmp_lg_u32 {s(sW)}, 0\ns_cbranch_scc1 {name}_noat")
            a(f"s_atomic_add {s(sAt)}, {s(WSSRD,2)}, {s(sPgO)} glc\n{name}_noat:")
        else:
            sparse = c["cevery"] > 1 or c["clast"] < trips
            if sparse:
                a(f"s_mov_b32 {s(sAt)}, 0\ns_and_b32 {s(sT0)}, {s(sCnt)}, {c['cevery'] - 1}\ns_cbranch_scc1 {name}_nocp")
                a(f"s_cmp_gt_u32 {s(sCnt)}, {c['clast']}\ns_cbranch_scc1 {name}_nocp\ns_mov_b32 {s(sAt)}, 1")
            a(f"s_add_u32 {s(sBase)}, {s(sBase)}, 0x100\ns_add_u32 {s(sPgO)}, {s(sPgO)}, 128\nv_mov_b32 {v(vPg)}, {s(sBase)}")
            if c["cld"]:
                a(f"s_load_dwordx8 {s(sPeer,8)}, {s(WSSRD,2)}, {s(sPgO)} glc")
            if c["cst"]:
                if c["cw"]:
                    a(f"s_add_u32 {s(sAt)}, {s(sAt)}, 128\ns_mov_b64 exec, {(1 << c['cw']) - 1}\nbuffer_store_dwordx4 {v(vTmp,4)}, {v(vPo)}, {s(WSSRD,4)}, {s(sAt)} offen {c['cfl']}\ns_mov_b64 exec, -1")
                else:
                    a(f"s_mov_b64 exec, 1\nbuffer_store_dword {v(vPg)}, {v(vPw)}, {s(WSSRD,4)}, {s(sPgO)} offen {c['cfl']}\ns_mov_b64 exec, -1")
                extra = [] if sparse else ["pg"]
            if sparse:
                a(f"{name}_nocp:")
        a(f"s_cmp_lg_u32 {s(sWant)}, 0\ns_cbranch_scc1 {name}_up")
        a(f"s_cmp_lg_u32 {s(sState)}, 0\ns_cbranch_scc1 {name}_down")
        body("lo", kv(0, FL) + extra)
        a(f"s_cbranch_scc1 {name}\ns_branch {name}_end")
        a(f"{name}_down:\ns_mov_b32 {s(sState)}, 0")
        self.vm, self.nxt, self.used, self.fill = kv(0, FL + 1) + extra, base + n + FL + 1, base + n, list(fill0)
        self.mute = True
        step(n)
        self.mute = False
        a(f"s_branch {name}_lo1")
        a(f"{name}_up:\ns_cmp_lg_u32 {s(sState)}, 0\ns_cbranch_scc1 {name}_hi\ns_mov_b32 {s(sState)}, 1")
        self.nxt, self.used = base + n + FL, base + n
        self.kv_load()
        a(f"{name}_hi:")
        c["FL"] = FL + 1
        body("hi", kv(0, FL) + extra + kv(FL, FL + 1))
        c["FL"] = FL
        a(f"s_cbranch_scc1 {name}\n{name}_end:")

    def srd(self, q, size):
        self.a(f"s_mov_b32 {s(q+2)}, {size}\ns_mov_b32 {s(q+3)}, 0x20000")

    def build(self):
        a, c = self.a, self.c
        S, FL = c["S"], c["FL"]
        a(f"{NAME}:")
        a("s_cmp_ge_u32 s2, 256\ns_cbranch_scc1 L_done")
        a(f"s_load_dwordx16 {s(ARG,16)}, s[0:1], 0\ns_load_dwordx8 {s(ARG+16,8)}, s[0:1], 64\ns_load_dwordx2 {s(WSSRD,2)}, s[0:1], 96")
        if c["diag"]:
            a(f"s_memrealtime s[74:75]\ns_mov_b32 {s(sStampN)}, 1\nv_mov_b32 {v(vStamp)}, 0")
        a(f"v_lshrrev_b32 {v(vT)}, 6, {v(vTid)}\nv_and_b32 {v(vLane)}, 63, {v(vTid)}")
        a(f"v_readfirstlane_b32 {s(sW)}, {v(vT)}")
        a(f"v_lshlrev_b32 {v(vL16)}, 4, {v(vLane)}")
        if c["hmap"] == "l":
            a(f"s_and_b32 {s(sH)}, s2, 31\ns_lshr_b32 {s(sSp)}, s2, 5")
        else:
            a(f"s_lshr_b32 {s(sH)}, s2, 3\ns_and_b32 {s(sSp)}, s2, 7")
        a(f"s_lshl_b32 {s(sR)}, {s(sH)}, 3\ns_add_u32 {s(sR)}, {s(sR)}, {s(sSp)}")
        a(f"s_lshl_b32 {s(sT0)}, {s(sR)}, 20\ns_lshl_b32 {s(sKV)}, {s(sW)}, 10\ns_mov_b32 {s(sVV)}, {s(sKV)}")
        if c["phase"] == "gi":
            a(f"s_bfe_u32 {s(sPh)}, s2, 0x30003\ns_lshl_b32 {s(sPh)}, {s(sPh)}, 16")
        else:
            a(f"s_mov_b32 {s(sPh)}, 0")
        self.srd(KSRD, 1 << 20); self.srd(WQSRD, 4 << 20); self.srd(XSRD, 1024)
        a(f"v_lshrrev_b32 {v(vU)}, 4, {v(vLane)}\nv_and_b32 {v(vT)}, 0xf0, {v(vL16)}")
        a(f"v_lshl_add_u32 {v(vWq)}, {v(vU)}, 18, {v(vT)}\nv_lshl_add_u32 {v(vWo)}, {v(vU)}, 15, {v(vT)}")
        a(f"s_lshl_b32 {s(sWoff)}, {s(sW)}, 20\ns_lshl_b32 {s(sT1)}, {s(sH)}, 8\ns_add_u32 {s(sWoff)}, {s(sWoff)}, {s(sT1)}")
        a("s_waitcnt lgkmcnt(0)")
        if c["diag"]:
            a(f"v_writelane_b32 {v(vStamp)}, s74, 0")
        a(f"s_mov_b64 {s(XSRD,2)}, {s(ARG,2)}")
        a(f"s_add_u32 {s(KSRD)}, {s(ARG+2)}, {s(sT0)}\ns_addc_u32 {s(KSRD+1)}, {s(ARG+3)}, 0")
        self.vmem(f"buffer_load_dwordx4 {v(vX,4)}, {v(vL16)}, {s(XSRD,4)}, 0 offen", "x")
        a(f"s_add_u32 {s(VSRD)}, {s(ARG+4)}, {s(sT0)}\ns_addc_u32 {s(VSRD+1)}, {s(ARG+5)}, 0")
        a(f"s_mov_b64 {s(WQSRD,2)}, {s(ARG+6,2)}")
        def small_loads():
            for q, arg, size in ((W1SRD, 12, 3584), (B1SRD, 14, 3584), (W2SRD, 16, 3584), (B2SRD, 18, 2), (WOSRD, 8, 4 << 20), (OUTSRD, 20, 1024)):
                a(f"s_mov_b64 {s(q,2)}, {s(ARG+arg,2)}")
                self.srd(q, size)
            self.srd(WSSRD, (4 << 20) if c["diag"] else WS_SIZE)
            a(f"v_lshlrev_b32 {v(vT)}, 4, {v(vTid)}\nv_mov_b32 {v(vP)}, 0")
            self.vmem(f"buffer_load_dwordx4 {v(vW1,4)}, {v(vT)}, {s(W1SRD,4)}, 0 offen", "w1")
            self.vmem(f"buffer_load_dwordx4 {v(vB1,4)}, {v(vT)}, {s(B1SRD,4)}, 0 offen", "b1")
            self.vmem(f"buffer_load_ushort {v(vB2)}, {v(vP)}, {s(B2SRD,4)}, 0 offen", "b2")
            self.vmem(f"buffer_load_dwordx4 {v(vW2,4)}, {v(vT)}, {s(W2SRD,4)}, 0 offen", "w2")
        def layernorm():
            a(f"s_mov_b32 {s(sHiM)}, 0xffff0000\ns_mov_b32 {s(sLog2e)}, {fbits(LOG2E)}")
            a(f"v_and_b32 {v(vT)}, 1, {v(vLane)}\nv_lshlrev_b32 {v(vT)}, 4, {v(vT)}\nv_mov_b32 {v(vU)}, 0xffff\nv_lshlrev_b32 {v(vU)}, {v(vT)}, {v(vU)}")
            a(f"v_bfe_u32 {v(vT)}, {v(vLane)}, 1, 2\nv_mov_b32 {v(vP)}, 0x0c0c0c0c\ns_mov_b32 {s(sT0)}, 0x01000100\ns_mov_b32 {s(sT1)}, 0x03020302")
            for k in range(4):
                a(f"v_cmp_eq_u32 vcc, {k}, {v(vT)}\nv_cndmask_b32 {v(vMask+k)}, 0, {v(vU)}, vcc")
            for k in range(4):
                a(f"v_bfi_b32 {v(vSel0+k)}, {v(vMask+k)}, {s(sT0)}, {v(vP)}\nv_bfi_b32 {v(vSel1+k)}, {v(vMask+k)}, {s(sT1)}, {v(vP)}")
            a(f"v_and_b32 {v(vAD)}, 15, {v(vLane)}\nv_lshlrev_b32 {v(vAD)}, 5, {v(vAD)}\nv_and_b32 {v(vT)}, 16, {v(vLane)}\nv_add_u32 {v(vAD)}, {v(vAD)}, {v(vT)}")
            a(f"v_mov_b32 {v(vM)}, 0xff800000\nv_mov_b32 {v(vL)}, 0")
            f, mean, sd, rs, t = vTmp, vTmp + 8, vTmp + 9, vTmp + 10, vTmp + 11
            self.wait_for("x")
            self.stamp()
            self.ln_sum(f, mean, t)
            self.ln_var(f, mean, sd, rs, t)
            for k in range(4):
                self.ln_pair(vX + k, f + 2*k, f + 2*k + 1, mean, sd, rs, t)
            a(f"s_lshl_b32 {s(sT0)}, {s(sW)}, 10\nv_add_u32 {v(vT)}, {s(sT0)}, {v(vL16)}")
            a(f"ds_write_b128 {v(vT)}, {v(vX,4)} offset:{XN}")
            a(f"s_mul_i32 {s(sT0)}, {s(sW)}, 1280\nv_and_b32 {v(vT)}, 0x30, {v(vLane)}\nv_lshlrev_b32 {v(vT)}, 2, {v(vT)}\nv_add_u32 {v(vT)}, {s(sT0)}, {v(vT)}")
            a("s_waitcnt lgkmcnt(0)")
            for k in range(4):
                a(f"ds_read_b128 {v(vSrc+4*k,4)}, {v(vT)} offset:{XN + 16*k}")
        self.pro_total = S
        side = self.side_blocks()
        for _ in range(c["pre"]):
            self.kv_load()
        a(f"s_load_dword {s(sTag)}, {s(WSSRD,2)}, 0")
        if c["ctl2"]:
            a(f"s_lshr_b32 {s(sPgO)}, s2, 3\ns_mul_i32 {s(sPgO)}, {s(sPgO)}, 4352\ns_add_u32 {s(sPgO)}, {s(sPgO)}, {WS_PG}")
            a(f"s_load_dword {s(sBase)}, {s(WSSRD,2)}, {s(sPgO)}")
        small_loads()
        credit = 0.0
        def paced():
            if self.nxt >= c["flp"]:
                self.wait_for(("kv", self.nxt - c["flp"]))
            self.kv_load()
        for t in range(32):
            if t == c["ln_at"]:
                layernorm()
            if t >= c["side_at"] and (t - c["side_at"]) % c["side_step"] == 0 and side:
                side.pop(0)()
            self.vmem(f"buffer_load_dwordx4 a[{4*t}:{4*t+3}], {v(vWq)}, {s(WQSRD,4)}, {s(sWoff)} offen {c['wflags']}", ("wq", t))
            if t < 31:
                a(f"s_add_u32 {s(sWoff)}, {s(sWoff)}, 8192")
            credit += c["kvper"]
            while credit >= 1 and self.nxt < self.pro_total - c["post"]:
                paced(); credit -= 1
        while self.nxt < self.pro_total - c["post"]:
            paced()
        a(f"s_lshl_b32 {s(sWoff)}, {s(sH)}, 17\ns_lshl_b32 {s(sT1)}, {s(sW)}, 8\ns_add_u32 {s(sWoff)}, {s(sWoff)}, {s(sT1)}")
        a("s_waitcnt lgkmcnt(0)")
        self.stamp()
        gemv_waits = [min(63, len(self.vm) - 1 - self.vm.index(("wq", t))) for t in range(32)]
        a(f"s_call_b64 {s(LINK,2)}, L_gemv")
        self.stamp()
        a(f"s_lshl_b32 {s(sT0)}, {s(sW)}, 9\nv_add_u32 {v(vU)}, {s(sT0)}, {v(vAD)}")
        a(f"ds_write_b128 {v(vU)}, {v(vG,4)} offset:{QP}")
        while self.nxt < self.pro_total:
            self.kv_load()
        a(f"v_and_b32 {v(vT)}, 0xf0, {v(vL16)}\nv_lshlrev_b32 {v(vT)}, 1, {v(vT)}")
        a("s_waitcnt lgkmcnt(0)\ns_barrier")
        for w in range(4):
            for hf in range(2):
                dst = (vSrc + 8*w + 4*hf) if w < 2 else (vTmp + 8*(w-2) + 4*hf)
                a(f"ds_read_b128 {v(dst,4)}, {v(vT)} offset:{QP + 512*w + 16*hf}")
        a(f"s_add_u32 {s(sTag)}, {s(sTag)}, 1\ns_and_b32 {s(sTag)}, {s(sTag)}, 0xff")
        a("s_waitcnt lgkmcnt(0)")
        for k in range(8):
            a(f"v_add_f32 {v(vSrc+k)}, {v(vSrc+k)}, {v(vSrc+8+k)}\nv_add_f32 {v(vTmp+k)}, {v(vTmp+k)}, {v(vTmp+8+k)}")
        for k in range(8):
            a(f"v_add_f32 {v(vSrc+k)}, {v(vSrc+k)}, {v(vTmp+k)}")
        for k in range(4):
            a(f"v_cvt_pk_bf16_f32 {v(vQ+k)}, {v(vSrc+2*k)}, {v(vSrc+2*k+1)}")
        self.stamp()

        a(f"s_lshl_b32 {s(sT0)}, {s(sW)}, 14\nv_add_u32 {v(vLa)}, {s(sT0)}, {v(vL16)}")
        self.fill = []
        assert not side
        side = self.late_blocks()
        n = 0
        while True:
            self.kstep(n)
            if n >= c["wo_start"] and (n - c["wo_start"]) % c["wo_every"] == 0 and self.nwo < 32:
                self.wo_load()
            if side and n >= c["R0"] + 8:
                blk = side.pop(0)
                if blk:
                    blk()
            n += 1
            if n % R == 0:
                self.stamp()
                if n >= c["R0"] and self.nwo == 32 and not side and self.nxt == self.steady(n - 1):
                    break
        self.c["alpha"] = 0
        def kloop(m):
            sw = None
            if self.nxt <= n + R < self.steady(m):
                assert self.nxt == n + R
                sw = (f"s_cmp_eq_u32 {s(sCnt)}, 1\ns_cselect_b64 {s(KSRD,2)}, {s(VSRD,2)}, {s(KSRD,2)}\n"
                      f"s_cselect_b32 {s(sKV)}, {s(sVV)}, {s(sKV)}")
            self.kstep(m, sw)
        self.loop("L_loop1", n, (256 - n) // R, kloop, 0, c["ctl1"])
        for t in self.fill + self.dpp_ops(255) + self.post_ops(63):
            a(t)
        a(f"s_lshl_b32 {s(sT0)}, {s(sW)}, 14\nv_add_u32 {v(vLa)}, {s(sT0)}, {v(vL16)}")
        for ror in (8, 4):
            a(f"v_max_f32_dpp {v(vM)}, {v(vM)}, {v(vM)} row_ror:{ror} row_mask:0xf bank_mask:0xf")
        self.rowreduce([vM], vT, "max")
        a(f"s_lshl_b32 {s(sT0)}, {s(sW)}, 2\nv_mov_b32 {v(vP)}, {s(sT0)}")
        a(f"ds_write_b32 {v(vP)}, {v(vM)} offset:{MLW}\ns_waitcnt lgkmcnt(0)\ns_barrier")
        a(f"ds_read_b128 {v(vTmp,4)}, {v(vZero)} offset:{MLW}")
        a(f"ds_read_b128 {v(vSc,4)}, {v(vLa)} offset:{SC}\nv_add_u32 {v(vLa)}, 0x400, {v(vLa)}")
        a("s_waitcnt lgkmcnt(1)")
        a(f"v_max3_f32 {v(vM)}, {v(vTmp)}, {v(vTmp+1)}, {v(vTmp+2)}\nv_max_f32 {v(vM)}, {v(vM)}, {v(vTmp+3)}")
        a(f"v_mul_f32 {v(vML)}, {s(sLog2e)}, {v(vM)}\nv_or_b32 {v(vM)}, {v(vM)}, {v(vTagV)}\ns_waitcnt lgkmcnt(0)")
        for t in self.p_ops(0):
            a(t)
        assert c["ctl2"] or not c["ctl1"]
        self.fill = []
        a("s_nop 1")
        self.loop("L_loop2", 0, 16 - c["tail"] // R, self.vstep, 256, c["ctl2"])
        if c["tail"]:
            t0 = 256 - c["tail"]
            self.nxt, self.used = self.steady(255 + t0), 256 + t0
            if c["ctl2"]:
                a(f"s_cmp_lg_u32 {s(sState)}, 0\ns_cbranch_scc1 L_tail")
                self.kv_load()
                a("L_tail:")
            self.vm = [("kv", i) for i in range(self.used, self.nxt)]
            self.in_tail = True
            for k in range(t0, 256):
                self.vstep(k)
                if k == 252:
                    for ror in (8, 4):
                        a(f"v_add_f32_dpp {v(vL)}, {v(vL)}, {v(vL)} row_ror:{ror} row_mask:0xf bank_mask:0xf")
                    self.rowreduce([vL], vT)
                    a(f"ds_write_b32 {v(vP)}, {v(vL)} offset:{MLW + 16}")
                if k % R == R - 1:
                    self.stamp()

        assert c["tail"]
        a(f"ds_write_b128 {v(vU)}, {v(vO,4)} offset:{OP}")
        a("s_waitcnt lgkmcnt(0)\ns_barrier")
        op, lw = vSrc, vSrc + 8
        for w in range(4):
            a(f"ds_read_b64 {v(op+2*w,2)}, {v(vOa)} offset:{OP + 512*w}")
        a(f"ds_read_b128 {v(lw,4)}, {v(vZero)} offset:{MLW + 16}")
        o0, o1, hi, lo = vTmp + 8, vTmp + 9, vTmp + 10, vTmp + 11
        a("s_waitcnt lgkmcnt(3)")
        a(f"v_add_f32 {v(o0)}, {v(op)}, {v(op+2)}\nv_add_f32 {v(o1)}, {v(op+1)}, {v(op+3)}")
        a("s_waitcnt lgkmcnt(1)")
        a(f"v_add_f32 {v(op+4)}, {v(op+4)}, {v(op+6)}\nv_add_f32 {v(op+5)}, {v(op+5)}, {v(op+7)}")
        a(f"v_add_f32 {v(o0)}, {v(o0)}, {v(op+4)}\nv_add_f32 {v(o1)}, {v(o1)}, {v(op+5)}")
        a(f"v_cvt_pk_bf16_f32 {v(hi)}, {v(o0)}, {v(o1)}")
        a(f"ds_write_b32 {v(vHw)}, {v(hi)} offset:{OH}")
        self.unpack(vTmp + 12, vTmp + 13, hi)
        a(f"v_sub_f32 {v(o0)}, {v(o0)}, {v(vTmp+12)}\nv_sub_f32 {v(o1)}, {v(o1)}, {v(vTmp+13)}")
        a(f"v_cvt_pk_bf16_f32 {v(lo)}, {v(o0)}, {v(o1)}")
        a(f"ds_write_b32 {v(vHw)}, {v(lo)} offset:{OH+256}")
        a("s_waitcnt lgkmcnt(2)")
        a(f"v_add_f32 {v(vTmp)}, {v(lw)}, {v(lw+1)}\nv_add_f32 {v(vTmp+1)}, {v(lw+2)}, {v(lw+3)}")
        for k in range(4):
            a(f"ds_read_b128 {v(vSrc+4*k,4)}, {v(vHr)} offset:{OH + 16*k}")
        a(f"v_add_f32 {v(vTmp)}, {v(vTmp)}, {v(vTmp+1)}\nv_bfi_b32 {v(vM+1)}, {v(vFF)}, {v(vTagV)}, {v(vTmp)}")
        a(f"s_cmp_lg_u32 {s(sW)}, 3\ns_cbranch_scc1 L_norec\ns_mov_b64 exec, 1")
        if c.get("mlstore", 1):
            a(f"buffer_store_dwordx2 {v(vM,2)}, {v(vZero)}, {s(WSSRD,4)}, {s(sMo)} offen sc1")
        a("s_mov_b64 exec, -1\nL_norec:")
        a("s_waitcnt lgkmcnt(0)")
        self.stamp()
        a(f"s_call_b64 {s(LINK,2)}, L_gemv")
        if c["ystore"] == 2:
            for k in range(2):
                a(f"v_permlane32_swap_b32 {v(vG+k)}, {v(vG+2+k)}")
            for k in range(2):
                a(f"v_add_f32 {v(vG+k)}, {v(vG+k)}, {v(vG+2+k)}")
            for k in range(2):
                a(f"v_bfi_b32 {v(vG+k)}, {v(vFF)}, {v(vTagV)}, {v(vG+k)}")
            a(f"buffer_store_dwordx2 {v(vG,2)}, {v(vYs)}, {s(WSSRD,4)}, {s(sYo)} offen {c['yflags']}")
        else:
            for k in range(4):
                a(f"v_mov_b32 {v(vTmp+k)}, {v(vG+k)}")
            for k in range(4):
                a(f"v_permlane32_swap_b32 {v(vG+k)}, {v(vTmp+k)}")
            for k in range(4):
                a(f"v_add_f32 {v(vG+k)}, {v(vG+k)}, {v(vTmp+k)}")
            for k in range(4):
                a(f"v_bfi_b32 {v(vG+k)}, {v(vFF)}, {v(vTagV)}, {v(vG+k)}")
            a("s_mov_b32 exec_hi, 0")
            if c["ystore"] == 4:
                a(f"buffer_store_dwordx4 {v(vG,4)}, {v(vAD)}, {s(WSSRD,4)}, {s(sYo)} offen {c['yflags']}")
            a("s_mov_b32 exec_hi, -1")
        self.stamp()
        a(f"s_cmp_ge_u32 s2, {c['ncons']}\ns_cbranch_scc1 L_fin")

        Y, ML2, Bv = vRing, vRing + 16, vRing + 24
        cl, ml, e, lsum, acc, bad = vRing + 28, vRing + 44, vRing + 54, vRing + 58, vRing + 62, vRing + 66
        a(f"s_mov_b32 {s(sCnt)}, {c['spin']}\ns_mov_b32 {s(sWarm)}, 0\ns_mov_b32 {s(sCoef)}, 0")
        a(f"s_mov_b64 {s(sInvM,2)}, -1\ns_mov_b64 {s(sInvY,2)}, -1")
        def yloads():
            for i in range(4):
                a(f"buffer_load_dwordx4 {v(Y+4*i,4)}, {v(vYo)}, {s(WSSRD,4)}, {s(sYi+i)} offen sc1")
        if c["early_y"]:
            yloads()
        else:
            a(f"v_not_b32 {v(Y)}, {v(vTagV)}")
        a("L_poll:")
        a(f"s_mov_b64 exec, {s(sInvM,2)}")
        for i in range(4):
            a(f"buffer_load_dwordx2 {v(ML2+2*i,2)}, {v(vMo)}, {s(WSSRD,4)}, {s(sMi+i)} offen sc1")
        a(f"buffer_load_dword {v(Bv)}, {v(vCb)}, {s(WSSRD,4)}, {s(sBo)} offen sc1")
        a(f"s_andn2_b64 exec, {s(sInvY,2)}, {s(sInvM,2)}\ns_cbranch_execz L_noy")
        a("L_polly:")
        yloads()
        a(f"L_noy:\ns_mov_b64 exec, -1\ns_cmp_lg_u32 {s(sCoef)}, 0\ns_cbranch_scc1 L_y")
        a("s_waitcnt vmcnt(0)")
        for k in range(9):
            a(f"v_xor_b32 {v(ml+k)}, {v(vTagV)}, {v(ML2+k)}")
        a(f"v_or3_b32 {v(bad)}, {v(ml)}, {v(ml+1)}, {v(ml+2)}")
        for k in (3, 5, 7):
            a(f"v_or3_b32 {v(bad)}, {v(bad)}, {v(ml+k)}, {v(ml+k+1)}")
        a(f"v_and_b32 {v(bad)}, 0xff, {v(bad)}\nv_cmp_ne_u32 {s(sInvM,2)}, 0, {v(bad)}")
        if c["early_y"]:
            a(f"s_cmp_eq_u32 {s(sWarm)}, 0\ns_cbranch_scc1 L_coef\ns_cmp_lg_u64 {s(sInvM,2)}, 0\ns_cbranch_scc1 L_y")
        else:
            a(f"s_cmp_eq_u64 {s(sInvM,2)}, 0\ns_cbranch_scc1 L_all\ns_cmp_eq_u32 {s(sWarm)}, 0\ns_cbranch_scc1 L_coef\ns_branch L_y\nL_all:")
        a(f"s_mov_b64 exec, {s(sInvY,2)}\ns_cbranch_execz L_noy2")
        yloads()
        a("L_noy2:\ns_mov_b64 exec, -1")
        a(f"L_coef:\ns_cmp_eq_u64 {s(sInvM,2)}, 0\ns_cselect_b32 {s(sCoef)}, 1, 0")
        def over_splits(op, dst, src):
            for step, ror in enumerate((4, 8)):
                for i in range(4):
                    x = src + i if step == 0 else dst + i
                    a(f"v_{op}_f32_dpp {v(dst+i)}, {v(x)}, {v(x)} row_ror:{ror} row_mask:0xf bank_mask:0xf")
            for i in range(4):
                a(f"v_mov_b32 {v(acc+i)}, {v(dst+i)}")
            for i in range(4):
                a(f"v_permlane16_swap_b32 {v(dst+i)}, {v(acc+i)}")
            for i in range(4):
                a(f"v_{op}_f32 {v(dst+i)}, {v(dst+i)}, {v(acc+i)}")
        for i in range(4):
            a(f"v_mul_f32 {v(e+i)}, {s(sLog2e)}, {v(ml+2*i)}")
        over_splits("max", lsum, e)
        for i in range(4):
            a(f"v_sub_f32 {v(e+i)}, {v(e+i)}, {v(lsum+i)}")
        for i in range(4):
            a(f"v_exp_f32 {v(e+i)}, {v(e+i)}")
        for i in range(4):
            a(f"v_mul_f32 {v(lsum+i)}, {v(e+i)}, {v(ml+2*i+1)}")
        over_splits("add", lsum, lsum)
        for i in range(4):
            a(f"v_rcp_f32 {v(lsum+i)}, {v(lsum+i)}")
        for i in range(4):
            a(f"v_mul_f32 {v(e+i)}, {v(e+i)}, {v(lsum+i)}")
        a("L_y:\ns_waitcnt vmcnt(0)")
        for k in range(16):
            a(f"v_xor_b32 {v(cl+k)}, {v(vTagV)}, {v(Y+k)}")
        a(f"v_or3_b32 {v(bad)}, {v(cl)}, {v(cl+1)}, {v(cl+2)}\nv_or3_b32 {v(bad+1)}, {v(cl+3)}, {v(cl+4)}, {v(cl+5)}")
        for k in range(6, 16, 2):
            b = bad + ((k >> 1) & 1)
            a(f"v_or3_b32 {v(b)}, {v(b)}, {v(cl+k)}, {v(cl+k+1)}")
        a(f"v_bitop3_b32 {v(bad)}, {v(bad)}, {v(bad+1)}, {v(vFF)} bitop3:0xa8")
        a(f"v_cmp_ne_u32 {s(sInvY,2)}, 0, {v(bad)}")
        for k in range(4):
            a(f"v_mul_f32 {v(acc+k)}, {v(e)}, {v(cl+k)}")
        a(f"s_or_b64 {s(sInv,2)}, {s(sInvY,2)}, {s(sInvM,2)}\ns_cbranch_scc0 L_sum\ns_cmp_eq_u32 {s(sWarm)}, 0\ns_cbranch_scc1 L_sum")
        a("L_again:")
        a(f"s_sub_u32 {s(sCnt)}, {s(sCnt)}, 1\ns_cmp_eq_u32 {s(sCnt)}, 0\ns_cbranch_scc1 L_store")
        a(f"s_mov_b64 exec, {s(sInvY,2)}\ns_cmp_lg_u32 {s(sCoef)}, 0\ns_cbranch_scc1 L_polly")
        if c["nap"]:
            a(f"s_sleep {c['nap']}")
        a("s_branch L_poll")
        a(f"L_sum:\ns_mov_b32 {s(sWarm)}, 1")
        for i in range(1, 4):
            for k in range(4):
                a(f"v_fmac_f32 {v(acc+k)}, {v(e+i)}, {v(cl+4*i+k)}")
        for k in (0, 2):
            a(f"v_permlane32_swap_b32 {v(acc+k)}, {v(acc+k+1)}")
        for k in (0, 2):
            a(f"v_add_f32 {v(acc+k)}, {v(acc+k)}, {v(acc+k+1)}")
        a(f"v_permlane16_swap_b32 {v(acc)}, {v(acc+2)}\nv_add_f32 {v(acc)}, {v(acc)}, {v(acc+2)}")
        for ror in (8, 4):
            a(f"v_add_f32_dpp {v(acc)}, {v(acc)}, {v(acc)} row_ror:{ror} row_mask:0xf bank_mask:0xf")
        a(f"ds_write_b32 {v(vRw)}, {v(acc)} offset:{RED}")
        a(f"s_cmp_lg_u64 {s(sInv,2)}, 0\ns_cbranch_scc1 L_again")
        a("L_store:\ns_mov_b64 exec, -1\ns_waitcnt lgkmcnt(0)\ns_barrier")
        a(f"s_cmp_lg_u32 {s(sW)}, 0\ns_cbranch_scc1 L_fin")
        a(f"ds_read_b128 {v(acc,4)}, {v(vRr)} offset:{RED}")
        a("s_mov_b32 exec_lo, 0xf000f\ns_mov_b32 exec_hi, 0xf000f\ns_waitcnt lgkmcnt(0)")
        a(f"v_add_f32 {v(acc)}, {v(acc)}, {v(acc+1)}\nv_add_f32 {v(acc+2)}, {v(acc+2)}, {v(acc+3)}\nv_add_f32 {v(acc)}, {v(acc)}, {v(acc+2)}")
        self.round1(acc)
        a(f"v_add_f32 {v(acc)}, {v(acc)}, {v(vXf)}")
        self.round1(acc)
        a(f"v_add_f32 {v(acc)}, {v(acc)}, {v(ml+8)}\nv_cvt_pk_bf16_f32 {v(acc)}, {v(acc)}, {v(acc)}")
        a(f"buffer_store_short {v(acc)}, {v(vCo)}, {s(OUTSRD,4)}, {s(sOo)} offen {c['outflags']}")
        a("s_mov_b64 exec, 1")
        a("s_cmp_lg_u32 s2, 0\ns_cbranch_scc1 L_fin0")
        a(f"buffer_store_dword {v(vTagV)}, {v(vZero)}, {s(WSSRD,4)}, 0 offen")
        a("L_fin0:\ns_mov_b64 exec, -1")
        a("L_fin:")
        if c["diag"]:
            self.stamp()
            a(f"s_getreg_b32 {s(sT0)}, hwreg(HW_REG_XCC_ID)\ns_mov_b32 m0, 63\nv_writelane_b32 {v(vStamp)}, {s(sT0)}, m0")
            a(f"s_mov_b32 m0, 62\nv_writelane_b32 {v(vStamp)}, {s(sStampN)}, m0")
            a(f"s_lshl_b32 {s(sT0)}, s2, 10\ns_add_u32 {s(sT0)}, {s(sT0)}, {WS_DIAG}\nv_lshlrev_b32 {v(vT)}, 2, {v(vTid)}")
            a(f"buffer_store_dword {v(vStamp)}, {v(vT)}, {s(WSSRD,4)}, {s(sT0)} offen")
        a("L_done:\ns_endpgm")

        a("L_gemv:")
        def perms(t):
            sel = vSel1 if t & 1 else vSel0
            A = vA if t & 1 else vO
            for k in range(4):
                a(f"v_perm_b32 {v(A+k)}, {v(vSrc+t//2)}, {v(vSrc+t//2)}, {v(sel+k)}")
        perms(0)
        for t in range(32):
            if t < 31:
                perms(t + 1)
            if t == 0 or t >= 32 - c["gw"]:
                a(f"s_waitcnt vmcnt({gemv_waits[max(t, 31 - c['gw'])]})")
            a(f"v_mfma_f32_16x16x32_bf16 {v(vG,4)}, {v(vA if t & 1 else vO,4)}, a[{4*t}:{4*t+3}], " + ("0" if t == 0 else v(vG, 4)))
        for k in range(4):
            a(f"v_mov_b32 {v(vO+k)}, 0")
        a(f"s_nop 7\ns_setpc_b64 {s(LINK,2)}")

        return self.a.finish()

HEADER = open("parallel_sum__mha_block_cached__mixer_token_mlp__decode.s.ref").read().split("; Override launch")[0]

def make(**kw):
    g = Gen(**kw)
    body = g.build()
    nv = vRing + max(4 * g.c["R0"], 72)
    acc = (nv + 3) // 4 * 4
    return (HEADER + f"; @launch grid=(256,1,1) block=(256,1,1) lds={LDS_SIZE}\n"
            + '.amdgcn_target "amdgcn-amd-amdhsa--gfx950"\n.text\n'
            + f".globl {NAME}\n.p2align 8\n.type {NAME},@function\n" + body
            + f""".section .rodata,"a"
.p2align 6
.amdhsa_kernel {NAME}
  .amdhsa_next_free_vgpr {acc + 128}
  .amdhsa_next_free_sgpr 102
  .amdhsa_accum_offset {acc}
  .amdhsa_group_segment_fixed_size 0
  .amdhsa_kernarg_size 104
  .amdhsa_user_sgpr_count 2
  .amdhsa_user_sgpr_kernarg_segment_ptr 1
  .amdhsa_system_sgpr_workgroup_id_x 1
  .amdhsa_float_denorm_mode_32 3
.end_amdhsa_kernel
""")

if __name__ == "__main__":
    out = sys.argv[1]
    kw = {}
    for p in sys.argv[2:]:
        k, val = p.split("=", 1)
        try:
            val = int(val)
        except ValueError:
            try:
                val = float(val)
            except ValueError:
                val = val.replace("+", " ")
        kw[k] = val
    open(out, "w").write(make(**kw))
```

```python
import struct, sys, math
from asmlib import Asm

NAME = "parallel_sum__mha_block_cached__mixer_token_mlp__decode_kernel"

def fbits(x):
    return "0x%08x" % struct.unpack("<I", struct.pack("<f", x))[0]

LOG2E = 1.4426950408889634
C2 = -2.0 * math.sqrt(2.0 / math.pi) * LOG2E
C1 = C2 * 0.044715

XN, QP, OP, MLW, BP, OH, RED, BB, DUM, SC = 0, 4096, 6144, 8192, 8256, 8448, 10496, 11520, 11648, 12288
LDS_SIZE = SC + 4 * 16384 + 1024
WS_B, WS_Y, WS_ML = 8192, 65536, 65536 + 256 * 2048
WS_PG = WS_ML + 16 * 4352
WS_SIZE = WS_PG + 32 * 4352 + 300000
WS_DIAG = 1 << 20

vTid, vL16, vWq, vWo = 0, 1, 2, 3
vO, vA, vQ, vMask, vSel0, vSel1 = 4, 8, 12, 16, 20, 24
vM, vML, vL, vS, vT, vP, vU, vAD = 28, 29, 30, 31, 32, 33, 34, 35
vG, vSrc, vX, vW1, vB1, vW2 = 36, 40, 56, 60, 64, 68
vB2, vH0, vH1, vAcc0, vAcc1, vLane, vXc, vStamp = 72, 73, 74, 75, 76, 77, 78, 79
vTmp, vRing = 80, 96
vS2, vPk, vPf, vPp, vSc, vLa = vSrc, vSrc + 2, vSrc + 4, vSrc + 6, vSrc + 8, vSrc + 12
vOa, vHw, vHr, vZero, vTagV, vFF, vYo, vMo, vXf, vCo, vCb, vYs, vRw, vRr, vPo, vPoll, vPg, vPw = 56, 57, 58, 59, 60, 61, 62, 63, 64, 65, 66, 67, 68, 69, 70, 71, 73, 74
sW, sH, sSp, sR, sKV, sCnt, sTag, sWoff, sLog2e, sT0, sT1 = 3, 50, 51, 52, 53, 54, 55, 56, 57, 58, 59
sInv, sRL, sHiM, sYo, sYo2, sMo, sStampN, sVV = 60, 62, 66, 67, 68, 69, 70, 71
sPh, sAd = 100, 101
sYi, sBo, sOo, sWarm, sCoef, sInvM, sInvY, sMi = 62, 76, 77, 78, 79, 80, 82, 84
sPgO, sBase, sAt, sWant, sState = 72, 73, 90, 91, 92
sPeer = 24
KSRD, VSRD, WQSRD, WOSRD, W1SRD, B1SRD, W2SRD, B2SRD, OUTSRD, WSSRD, XSRD = 8, 12, 16, 20, 24, 28, 32, 36, 40, 44, 4
LINK = 48
FLAG = BB
ARG = 76

def v(i, n=1):
    return f"v{i}" if n == 1 else f"v[{i}:{i+n-1}]"
def s(i, n=1):
    return f"s{i}" if n == 1 else f"s[{i}:{i+n-1}]"

DEFAULT = dict(R0=40, S=40, FL=5, alpha=0.25, pre=6, kvper=0.9, post=6, flp=6, ln_at=4, side_at=8, side_step=2,
               wo_start=32, wo_every=2, gran=1, tail=16, tail_rate=2, tail_max=40, gw=4, ncons=32, outflags="", nap=0, mlstride=4352, early_y=0, ctl1=0, ctl2=0, thr=4, cmode=1, cwave=0, cst=1, cld=1, cfl="sc1", cw=0, cevery=1, clast=99, pretouch=0, frac=1, fper=4, ystore=4, yflags="sc1", wflags="nt", kvflags="nt", diag=0, spin=1 << 20, hmap="l", phase="gi")
R = 16

class Gen:
    def __init__(self, **kw):
        self.c = dict(DEFAULT); self.c.update(kw)
        self.a = Asm()
        self.vm = []
        self.stubs = []
        self.nxt = 0
        self.used = 0
        self.nwo = 0
        self.in_tail = False
        self.mute = False
        self.free_slot = {}

    def vmem(self, text, tag):
        self.a(text); self.vm.append(tag)
    def wait_for(self, tag):
        n = len(self.vm) - 1 - self.vm.index(tag)
        self.a(f"s_waitcnt vmcnt({min(n, 63)})")

    def stamp(self):
        if not self.c["diag"]:
            return
        a = self.a
        a(f"s_memrealtime s[74:75]\ns_waitcnt lgkmcnt(0)\ns_mov_b32 m0, {s(sStampN)}\nv_writelane_b32 {v(vStamp)}, s74, m0\ns_add_u32 {s(sStampN)}, {s(sStampN)}, 1")

    def slot(self, n):
        if n in self.free_slot:
            return vRing + 4 * self.free_slot[n]
        return vRing + 4 * (n if n < self.c["R0"] else n % R)
    def can(self):
        n, R0 = self.nxt, self.c["R0"]
        if self.in_tail:
            busy = {self.slot(m) for m in range(self.used, n)}
            for k in range(R0):
                if vRing + 4 * k not in busy:
                    self.free_slot[n] = k
                    return True
            return False
        prev = -1 if n < R0 else (n - R if n - R >= R0 else n % R)
        return prev < self.used
    def steady(self, n):
        g = self.c["gran"]
        return -(-(n + 1 + self.c["FL"]) // g) * g + (1 if n % self.c["fper"] < self.c["frac"] else 0)
    def kv_load(self, late_add=False):
        assert self.can()
        n = self.nxt
        self.a(f"s_xor_b32 {s(sAd)}, {s(sKV)}, {s(sPh)}")
        self.vmem(f"buffer_load_dwordx4 {v(self.slot(n),4)}, {v(vL16)}, {s(KSRD,4)}, {s(sAd)} offen {self.c['kvflags']}", ("kv", n))
        self.nxt += 1
        add = f"s_add_u32 {s(sKV)}, {s(sKV)}, 4096"
        if late_add:
            return add
        self.a(add)
    def issue_at(self, n):
        c = self.c
        if self.mute:
            return []
        want = max(self.steady(n), self.pro_total + int((n + 1) * c["alpha"]))
        if self.in_tail:
            want = min(512, max(want, min(self.nxt + c["tail_rate"], n + 1 + c["tail_max"])))
        add = None
        while self.nxt < want and (self.can() or self.nxt < self.steady(n)):
            if add:
                self.a(add)
            add = self.kv_load(late_add=True)
        return [add] if add else []

    def wo_load(self):
        t = self.nwo
        if t % 4 == 0 and t:
            self.a(f"s_add_u32 {s(sWoff)}, {s(sWoff)}, 4096")
        self.vmem(f"buffer_load_dwordx4 a[{4*t}:{4*t+3}], {v(vWo)}, {s(WOSRD,4)}, {s(sWoff)} offen offset:{(t%4)*1024} {self.c['wflags']}", ("wo", t))
        self.nwo += 1

    def allreduce(self, regs, tmp, op="add"):
        a = self.a
        for ror in (8, 4, 2, 1):
            for r in regs:
                a(f"v_{op}_f32_dpp {v(r)}, {v(r)}, {v(r)} row_ror:{ror} row_mask:0xf bank_mask:0xf")
        self.rowreduce(regs, tmp, op)
    def rowreduce(self, regs, tmp, op="add"):
        a = self.a
        for sw in (16, 32):
            for k, r in enumerate(regs):
                a(f"v_mov_b32 {v(tmp+k)}, {v(r)}")
            for k, r in enumerate(regs):
                a(f"v_permlane{sw}_swap_b32 {v(r)}, {v(tmp+k)}")
            for k, r in enumerate(regs):
                a(f"v_{op}_f32 {v(r)}, {v(r)}, {v(tmp+k)}")
    def unpack(self, dlo, dhi, src):
        self.a(f"v_lshlrev_b32 {v(dlo)}, 16, {v(src)}\nv_and_b32 {v(dhi)}, {s(sHiM)}, {v(src)}")
    def round1(self, r):
        self.a(f"v_cvt_pk_bf16_f32 {v(r)}, {v(r)}, {v(r)}\nv_lshlrev_b32 {v(r)}, 16, {v(r)}")

    def ln_sum(self, f, acc, tmp):
        a = self.a
        for k in range(4):
            self.unpack(f + 2*k, f + 2*k + 1, vX + k)
        a(f"v_add_f32 {v(acc)}, {v(f)}, {v(f+1)}\nv_add_f32 {v(tmp)}, {v(f+2)}, {v(f+3)}")
        a(f"v_add_f32 {v(acc)}, {v(acc)}, {v(tmp)}\nv_add_f32 {v(tmp)}, {v(f+4)}, {v(f+5)}")
        a(f"v_add_f32 {v(acc)}, {v(acc)}, {v(tmp)}\nv_add_f32 {v(tmp)}, {v(f+6)}, {v(f+7)}")
        a(f"v_add_f32 {v(acc)}, {v(acc)}, {v(tmp)}")
        self.allreduce([acc], tmp)
        a(f"v_mul_f32 {v(acc)}, {fbits(1/512)}, {v(acc)}")
    def ln_var(self, f, mean, sd, rs, tmp):
        a = self.a
        for k in range(8):
            a(f"v_sub_f32 {v(tmp)}, {v(f+k)}, {v(mean)}")
            a(f"v_mul_f32 {v(sd)}, {v(tmp)}, {v(tmp)}" if k == 0 else f"v_fmac_f32 {v(sd)}, {v(tmp)}, {v(tmp)}")
        self.allreduce([sd], tmp)
        a(f"v_mul_f32 {v(sd)}, {fbits(1/512)}, {v(sd)}")
        self.round1(mean)
        self.round1(sd)
        a(f"v_add_f32 {v(sd)}, {fbits(1e-5)}, {v(sd)}")
        self.round1(sd)
        a(f"v_sqrt_f32 {v(sd)}, {v(sd)}")
        self.round1(sd)
        a(f"v_rcp_f32 {v(rs)}, {v(sd)}")
    def ln_pair(self, dst, f0, f1, mean, sd, rs, t):
        a = self.a
        a(f"v_sub_f32 {v(f0)}, {v(f0)}, {v(mean)}\nv_sub_f32 {v(f1)}, {v(f1)}, {v(mean)}")
        a(f"v_cvt_pk_bf16_f32 {v(t)}, {v(f0)}, {v(f1)}")
        self.unpack(f0, f1, t)
        for f in (f0, f1):
            a(f"v_mul_f32 {v(t)}, {v(f)}, {v(rs)}")
            a(f"v_fma_f32 {v(f)}, -{v(t)}, {v(sd)}, {v(f)}")
            a(f"v_fma_f32 {v(f)}, {v(f)}, {v(rs)}, {v(t)}")
        a(f"v_cvt_pk_bf16_f32 {v(dst)}, {v(f0)}, {v(f1)}")

    def side_blocks(self):
        a = self.a
        f, mean, sd, rs, t = vTmp, vTmp + 8, vTmp + 9, vTmp + 10, vTmp + 11
        def b_sum():
            a(f"s_lshl_b32 {s(sT0)}, {s(sR)}, 2\ns_lshl_b32 {s(sT1)}, {s(sW)}, 10\ns_add_u32 {s(sT0)}, {s(sT0)}, {s(sT1)}")
            a(f"v_mov_b32 {v(vH0)}, {s(sT0)}\nds_read_b32 {v(vH1)}, {v(vH0)} offset:{XN}")
            self.ln_sum(f, mean, t)
        def b_var():
            self.ln_var(f, mean, sd, rs, t)
            a("s_waitcnt lgkmcnt(0)")
            self.unpack(f, f + 1, vH1)
            self.ln_pair(vH1, f, f + 1, mean, sd, rs, t)
            a(f"v_lshlrev_b32 {v(vH0)}, 16, {v(vH1)}\nv_and_b32 {v(vH1)}, {s(sHiM)}, {v(vH1)}")
            a(f"v_mov_b32 {v(vAcc0)}, 0\nv_mov_b32 {v(vAcc1)}, 0")
        def piece(k, col):
            def run():
                wl, wh, bl, bh, u0, u1, t0, t1 = range(vTmp, vTmp + 8)
                if k == 0 and col == 0:
                    self.wait_for("w2")
                if col == 0:
                    self.unpack(wl, wh, vW1 + k)
                    self.unpack(bl, bh, vB1 + k)
                h = vH1 if col else vH0
                acc = vAcc1 if col else vAcc0
                a(f"v_mul_f32 {v(u0)}, {v(h)}, {v(wl)}\nv_mul_f32 {v(u1)}, {v(h)}, {v(wh)}")
                a(f"v_cvt_pk_bf16_f32 {v(t0)}, {v(u0)}, {v(u1)}")
                self.unpack(u0, u1, t0)
                a(f"v_add_f32 {v(u0)}, {v(u0)}, {v(bl)}\nv_add_f32 {v(u1)}, {v(u1)}, {v(bh)}")
                a(f"v_cvt_pk_bf16_f32 {v(t0)}, {v(u0)}, {v(u1)}")
                self.unpack(u0, u1, t0)
                a(f"v_mul_f32 {v(t0)}, {v(u0)}, {v(u0)}\nv_mul_f32 {v(t1)}, {v(u1)}, {v(u1)}")
                a(f"v_mov_b32 {v(vTmp+8)}, {fbits(C1)}")
                a(f"v_fmaak_f32 {v(t0)}, {v(t0)}, {v(vTmp+8)}, {fbits(C2)}\nv_fmaak_f32 {v(t1)}, {v(t1)}, {v(vTmp+8)}, {fbits(C2)}")
                a(f"v_mul_f32 {v(t0)}, {v(t0)}, {v(u0)}\nv_mul_f32 {v(t1)}, {v(t1)}, {v(u1)}")
                a(f"v_exp_f32 {v(t0)}, {v(t0)}\nv_exp_f32 {v(t1)}, {v(t1)}")
                a(f"v_add_f32 {v(t0)}, 1.0, {v(t0)}\nv_add_f32 {v(t1)}, 1.0, {v(t1)}")
                a(f"v_rcp_f32 {v(t0)}, {v(t0)}\nv_rcp_f32 {v(t1)}, {v(t1)}")
                a(f"v_mul_f32 {v(u0)}, {v(u0)}, {v(t0)}\nv_mul_f32 {v(u1)}, {v(u1)}, {v(t1)}")
                a(f"v_cvt_pk_bf16_f32 {v(t0)}, {v(u0)}, {v(u1)}")
                a(f"v_dot2_f32_bf16 {v(acc)}, {v(t0)}, {v(vW2+k)}, {v(acc)}")
            return run
        def b_red():
            self.allreduce([vAcc0, vAcc1], vTmp)
            a(f"s_lshl_b32 {s(sT0)}, {s(sW)}, 3\nv_mov_b32 {v(vTmp)}, {s(sT0)}")
            a(f"v_mov_b32 {v(vTmp+2)}, {v(vAcc0)}\nv_mov_b32 {v(vTmp+3)}, {v(vAcc1)}")
            a(f"ds_write_b64 {v(vTmp)}, {v(vTmp+2,2)} offset:{BP}")
        return [b_sum, b_var] + [piece(k, c) for k in range(4) for c in range(2)] + [b_red]

    def late_blocks(self):
        a = self.a
        bp = vTmp
        def b_read():
            a(f"v_mov_b32 {v(vZero)}, 0\nv_mov_b32 {v(vTagV)}, {s(sTag)}\nv_mov_b32 {v(vFF)}, 0xff")
            a(f"ds_read_b128 {v(bp,4)}, {v(vZero)} offset:{BP}\nds_read_b128 {v(bp+4,4)}, {v(vZero)} offset:{BP+16}")
            a(f"s_lshl_b32 {s(sOo)}, s2, 5\nv_bfe_u32 {v(vCo)}, {v(vLane)}, 5, 1\nv_bfe_u32 {v(vT)}, {v(vLane)}, 4, 1")
            a(f"v_lshl_add_u32 {v(vCo)}, {v(vT)}, 1, {v(vCo)}\nv_and_b32 {v(vT)}, 3, {v(vLane)}\nv_lshl_add_u32 {v(vCo)}, {v(vT)}, 2, {v(vCo)}")
            a(f"v_lshlrev_b32 {v(vRr)}, 4, {v(vCo)}\ns_lshl_b32 {s(sT0)}, {s(sW)}, 2\nv_add_u32 {v(vRw)}, {s(sT0)}, {v(vRr)}")
            a(f"v_lshlrev_b32 {v(vCb)}, 2, {v(vCo)}\nv_lshlrev_b32 {v(vCo)}, 1, {v(vCo)}")
            self.vmem(f"buffer_load_ushort {v(vXf)}, {v(vCo)}, {s(XSRD,4)}, {s(sOo)} offen", "xc")
        def b_pub():
            a(f"v_lshlrev_b32 {v(vB2)}, 16, {v(vB2)}\ns_waitcnt lgkmcnt(0)")
            for j in range(2):
                a(f"v_add_f32 {v(bp+j)}, {v(bp+j)}, {v(bp+2+j)}\nv_add_f32 {v(bp+4+j)}, {v(bp+4+j)}, {v(bp+6+j)}")
            for j in range(2):
                a(f"v_add_f32 {v(bp+j)}, {v(bp+j)}, {v(bp+4+j)}")
            for j in range(2):
                self.round1(bp + j)
                a(f"v_add_f32 {v(bp+j)}, {v(bp+j)}, {v(vB2)}")
                self.round1(bp + j)
                a(f"v_or_b32 {v(bp+j)}, {v(bp+j)}, {v(vTagV)}")
            a(f"s_lshl_b32 {s(sT0)}, {s(sR)}, 3\ns_add_u32 {s(sT0)}, {s(sT0)}, {WS_B}")
            a(f"s_cmp_lg_u32 {s(sW)}, 0\ns_cbranch_scc1 L_nob\ns_mov_b64 exec, 1")
            a(f"buffer_store_dwordx2 {v(bp,2)}, {v(vZero)}, {s(WSSRD,4)}, {s(sT0)} offen sc1")
            a("s_mov_b64 exec, -1\nL_nob:")
        def addr():
            a(f"v_lshlrev_b32 {v(vOa)}, 3, {v(vLane)}\ns_lshl_b32 {s(sT0)}, {s(sW)}, 9")
            a(f"v_lshl_add_u32 {v(vHw)}, {v(vLane)}, 2, {s(sT0)}")
            a(f"v_and_b32 {v(vT)}, 8, {v(vLane)}\nv_lshlrev_b32 {v(vT)}, 5, {v(vT)}\nv_and_b32 {v(vHr)}, 0x30, {v(vLane)}")
            a(f"v_lshl_add_u32 {v(vHr)}, {v(vHr)}, 2, {v(vT)}\nv_add_u32 {v(vHr)}, {s(sT0)}, {v(vHr)}")
            a(f"s_lshl_b32 {s(sYo)}, {s(sR)}, 11\ns_add_u32 {s(sYo)}, {s(sYo)}, {s(sT0)}\ns_add_u32 {s(sYo)}, {s(sYo)}, {WS_Y}")
            ms = self.c["mlstride"]
            a(f"s_lshr_b32 {s(sMo)}, {s(sR)}, 4\ns_mul_i32 {s(sMo)}, {s(sMo)}, {ms}\ns_and_b32 {s(sT1)}, {s(sR)}, 15\ns_lshl_b32 {s(sT1)}, {s(sT1)}, 3")
            a(f"s_add_u32 {s(sMo)}, {s(sMo)}, {s(sT1)}\ns_add_u32 {s(sMo)}, {s(sMo)}, {WS_ML}")
            a(f"v_lshrrev_b32 {v(vT)}, 2, {v(vLane)}\nv_lshlrev_b32 {v(vMo)}, 3, {v(vT)}\nv_and_b32 {v(vYo)}, 3, {v(vLane)}")
            a(f"v_lshlrev_b32 {v(vYo)}, 4, {v(vYo)}\nv_lshl_add_u32 {v(vYo)}, {v(vT)}, 11, {v(vYo)}")
            a(f"v_bfe_u32 {v(vT)}, {v(vLane)}, 5, 1\nv_lshl_add_u32 {v(vYs)}, {v(vT)}, 3, {v(vAD)}")
            a(f"s_mul_i32 {s(sMi)}, {s(sW)}, {4 * ms}\ns_add_u32 {s(sMi)}, {s(sMi)}, {WS_ML}")
            a(f"s_lshl_b32 {s(sBo)}, s2, 6\ns_lshl_b32 {s(sYi)}, {s(sW)}, 17\ns_add_u32 {s(sYi)}, {s(sYi)}, {s(sBo)}")
            a(f"s_add_u32 {s(sYi)}, {s(sYi)}, {WS_Y}\ns_add_u32 {s(sBo)}, {s(sBo)}, {WS_B}")
            for i in range(1, 4):
                a(f"s_add_u32 {s(sYi+i)}, {s(sYi+i-1)}, 0x8000\ns_add_u32 {s(sMi+i)}, {s(sMi+i-1)}, {ms}")
        def pace():
            a(f"s_cmp_eq_u32 {s(sW)}, 0\ns_cselect_b32 {s(sT1)}, 0, {DUM - FLAG}\nv_mov_b32 {v(vPw)}, {s(sT1)}")
            a(f"s_mov_b32 {s(sState)}, 0\nv_mov_b32 {v(vPoll)}, 0\nds_write_b32 {v(vPw)}, {v(vZero)} offset:{FLAG}")
            if self.c["cmode"] == 2:
                a(f"s_and_b32 {s(sT0)}, s2, 7\ns_lshl_b32 {s(sT0)}, {s(sT0)}, 2\ns_cmp_eq_u32 {s(sW)}, {self.c['cwave']}\ns_cselect_b32 {s(sT1)}, {s(sT0)}, 0x7ff00000")
                a(f"s_cselect_b32 {s(sAt)}, 0, 0x7ff00000\nv_add_u32 {v(vPo)}, {s(sAt)}, {v(vL16)}\ns_mul_i32 {s(sAt)}, s2, 3456\ns_add_u32 {s(sAt)}, {s(sAt)}, {1 << 21}")
                a(f"v_mov_b32 {v(vPw)}, {s(sT1)}\ns_mov_b32 {s(sBase)}, {s(sTag)}\ns_mov_b32 {s(sWant)}, 0")
        def touch():
            self.srd(VSRD, 1 << 20)
            a("s_mov_b64 exec, 1")
            self.vmem(f"buffer_load_dword {v(vTmp+12)}, {v(vZero)}, {s(VSRD,4)}, {s(sVV)} offen nt", "t0")
            self.vmem(f"buffer_load_dword {v(vTmp+13)}, {v(vZero)}, {s(WSSRD,4)}, {s(sYo)} offen nt", "t1")
            self.vmem(f"buffer_load_dword {v(vTmp+14)}, {v(vZero)}, {s(OUTSRD,4)}, 0 offen nt", "t2")
            a("s_mov_b64 exec, -1")
        def xcol():
            self.wait_for("xc")
            a(f"v_lshlrev_b32 {v(vXf)}, 16, {v(vXf)}")
        return [b_read, addr, b_pub, pace, touch if self.c['pretouch'] else None, None, None, None, xcol]

    def post_ops(self, g):
        pk = vPk + (g & 1)
        return [f"v_cvt_pk_bf16_f32 {v(pk)}, {v(pk)}, {v(pk)}", f"v_lshlrev_b32 {v(pk)}, 16, {v(pk)}",
                f"v_mul_f32 {v(pk)}, {fbits(128 ** -0.5)}, {v(pk)}",
                f"v_cvt_pk_bf16_f32 {v(pk)}, {v(pk)}, {v(pk)}", f"v_lshlrev_b32 {v(pk)}, 16, {v(pk)}",
                f"v_max_f32 {v(vM)}, {v(vM)}, {v(pk)}",
                f"ds_write_b32 {v(vLa)}, {v(pk)} offset:{SC + 4 * (g & 3)}"] + ([f"v_add_u32 {v(vLa)}, 0x400, {v(vLa)}"] if g & 3 == 3 else [])
    def dpp_ops(self, m):
        S = vS2 + (m & 1)
        ops = [f"v_add_f32_dpp {v(S)}, {v(S)}, {v(S)} row_ror:{r} row_mask:0xf bank_mask:0xf" for r in (8, 4, 2)]
        return ops + [f"v_add_f32_dpp {v(vPk + ((m >> 2) & 1))}, {v(S)}, {v(S)} row_ror:1 row_mask:0xf bank_mask:{hex(1 << (m & 3))}"]
    def kstep(self, m, pre=None):
        a = self.a
        K = self.slot(m); S = vS2 + (m & 1)
        self.wait_for(("kv", m))
        if pre:
            a(pre)
        fill = self.issue_at(m) + self.fill[:2]
        del self.fill[:2]
        dpp = self.dpp_ops(m - 1) if m else []
        for k in range(4):
            a(f"v_dot2_f32_bf16 {v(S)}, {v(K+k)}, {v(vQ+k)}, " + ("0" if k == 0 else v(S)))
            if k and fill:
                a(fill.pop(0))
            if dpp:
                a(dpp[k])
        assert not fill
        self.used = m + 1
        if m and (m - 1) & 3 == 3:
            self.fill += self.post_ops((m - 1) >> 2)

    def p_ops(self, g):
        return [f"v_fma_f32 {v(vT)}, {v(vSc + (g & 3))}, {s(sLog2e)}, -{v(vML)}", f"v_exp_f32 {v(vPf + (g & 1))}, {v(vT)}",
                f"v_cvt_pk_bf16_f32 {v(vPp + (g & 1))}, {v(vPf + (g & 1))}, {v(vPf + (g & 1))}"]
    def vstep(self, n):
        a = self.a
        g, q = n >> 2, n & 3
        nxt = self.p_ops(g + 1)
        if q == 0:
            a(f"v_add_f32 {v(vL)}, {v(vL)}, {v(vPf + (g & 1))}")
        if self.in_tail and g == 63:
            nxt = ["", "", ""]
        if q == 1:
            if g & 3 == 3 and nxt[0]:
                a("s_waitcnt lgkmcnt(0)")
            a(nxt[0]); a(nxt[1])
        if q == 2:
            a(nxt[2])
            if g & 3 == 2 and not (self.in_tail and g == 62):
                a(f"ds_read_b128 {v(vSc,4)}, {v(vLa)} offset:{SC}\nv_add_u32 {v(vLa)}, 0x400, {v(vLa)}")
        for k in range(4):
            a(f"v_and_b32_dpp {v(vA+k)}, {v(vPp + (g & 1))}, {v(vMask+k)} row_newbcast:{4*q} row_mask:0xf bank_mask:0xf")
        self.wait_for(("kv", 256 + n))
        for t in self.issue_at(256 + n):
            a(t)
        a(f"v_mfma_f32_16x16x32_bf16 {v(vO,4)}, {v(vA,4)}, {v(self.slot(256 + n),4)}, {v(vO,4)}")
        self.used = 256 + n + 1

    def loop(self, name, n, trips, step, base, ctl):
        a, c = self.a, self.c
        FL = c["FL"]
        fill0 = list(self.fill)
        def body(tag, vm):
            self.vm, self.nxt, self.used, self.fill = list(vm), base + n + sum(1 for t in vm if t[0] == 'kv'), base + n, list(fill0)
            for k in range(R):
                step(n + k)
                if k == 0:
                    a(f"{name}_{tag}1:")
                if ctl and c["cmode"] == 2 and k == 13:
                    a(f"s_waitcnt lgkmcnt(0)\ns_mov_b32 {s(sT0)}, 0")
                    for j in range(8):
                        a(f"s_cmp_eq_u32 {s(sPeer+j)}, {s(sBase)}\ns_addc_u32 {s(sT0)}, {s(sT0)}, 0")
                    a(f"s_cmp_ge_u32 {s(sT0)}, {c['thr']}\ns_cselect_b32 {s(sT0)}, 1, 0")
                    if c["cevery"] > 1 or c["clast"] < trips:
                        a(f"s_cmp_lg_u32 {s(sAt)}, 0\ns_cselect_b32 {s(sWant)}, {s(sT0)}, {s(sWant)}")
                    else:
                        a(f"s_mov_b32 {s(sWant)}, {s(sT0)}")
                if ctl and c["cmode"] == 1 and k == 13:
                    a(f"s_waitcnt lgkmcnt(0)\ns_sub_u32 {s(sT0)}, {s(sAt)}, {s(sBase)}\ns_add_u32 {s(sBase)}, {s(sBase)}, 8")
                    a(f"s_cmp_ge_i32 {s(sT0)}, {c['thr']}\ns_cselect_b32 {s(sT0)}, 1, 0\nv_mov_b32 {v(vPg)}, {s(sT0)}\nds_write_b32 {v(vPw)}, {v(vPg)} offset:{FLAG}")
                if ctl and c['cmode'] == 1 and k == 15:
                    a(f"ds_read_b32 {v(vPoll)}, {v(vZero)} offset:{FLAG}")
            assert self.fill == fill0
            self.stamp()
            a(f"s_sub_u32 {s(sCnt)}, {s(sCnt)}, 1\ns_cmp_lg_u32 {s(sCnt)}, 0")
        kv = lambda lo, hi: [("kv", base + n + i) for i in range(lo, hi)]
        a(f"s_mov_b32 {s(sCnt)}, {trips}\n{name}:")
        if not ctl:
            body("lo", kv(0, self.steady(base + n - 1) - base - n))
            a(f"s_cbranch_scc1 {name}")
            return
        assert c["gran"] == 1 and c["frac"] == 0
        extra = []
        if c["cmode"] == 1:
            a(f"s_waitcnt lgkmcnt(0)\nv_readfirstlane_b32 {s(sWant)}, {v(vPoll)}")
            a(f"s_mov_b32 {s(sAt)}, 1\ns_cmp_lg_u32 {s(sW)}, 0\ns_cbranch_scc1 {name}_noat")
            a(f"s_atomic_add {s(sAt)}, {s(WSSRD,2)}, {s(sPgO)} glc\n{name}_noat:")
        else:
            sparse = c["cevery"] > 1 or c["clast"] < trips
            if sparse:
                a(f"s_mov_b32 {s(sAt)}, 0\ns_and_b32 {s(sT0)}, {s(sCnt)}, {c['cevery'] - 1}\ns_cbranch_scc1 {name}_nocp")
                a(f"s_cmp_gt_u32 {s(sCnt)}, {c['clast']}\ns_cbranch_scc1 {name}_nocp\ns_mov_b32 {s(sAt)}, 1")
            a(f"s_add_u32 {s(sBase)}, {s(sBase)}, 0x100\ns_add_u32 {s(sPgO)}, {s(sPgO)}, 128\nv_mov_b32 {v(vPg)}, {s(sBase)}")
            if c["cld"]:
                a(f"s_load_dwordx8 {s(sPeer,8)}, {s(WSSRD,2)}, {s(sPgO)} glc")
            if c["cst"]:
                if c["cw"]:
                    a(f"s_add_u32 {s(sAt)}, {s(sAt)}, 128\ns_mov_b64 exec, {(1 << c['cw']) - 1}\nbuffer_store_dwordx4 {v(vTmp,4)}, {v(vPo)}, {s(WSSRD,4)}, {s(sAt)} offen {c['cfl']}\ns_mov_b64 exec, -1")
                else:
                    a(f"s_mov_b64 exec, 1\nbuffer_store_dword {v(vPg)}, {v(vPw)}, {s(WSSRD,4)}, {s(sPgO)} offen {c['cfl']}\ns_mov_b64 exec, -1")
                extra = [] if sparse else ["pg"]
            if sparse:
                a(f"{name}_nocp:")
        a(f"s_cmp_lg_u32 {s(sWant)}, 0\ns_cbranch_scc1 {name}_up")
        a(f"s_cmp_lg_u32 {s(sState)}, 0\ns_cbranch_scc1 {name}_down")
        body("lo", kv(0, FL) + extra)
        a(f"s_cbranch_scc1 {name}\ns_branch {name}_end")
        a(f"{name}_down:\ns_mov_b32 {s(sState)}, 0")
        self.vm, self.nxt, self.used, self.fill = kv(0, FL + 1) + extra, base + n + FL + 1, base + n, list(fill0)
        self.mute = True
        step(n)
        self.mute = False
        a(f"s_branch {name}_lo1")
        a(f"{name}_up:\ns_cmp_lg_u32 {s(sState)}, 0\ns_cbranch_scc1 {name}_hi\ns_mov_b32 {s(sState)}, 1")
        self.nxt, self.used = base + n + FL, base + n
        self.kv_load()
        a(f"{name}_hi:")
        c["FL"] = FL + 1
        body("hi", kv(0, FL) + extra + kv(FL, FL + 1))
        c["FL"] = FL
        a(f"s_cbranch_scc1 {name}\n{name}_end:")

    def srd(self, q, size):
        self.a(f"s_mov_b32 {s(q+2)}, {size}\ns_mov_b32 {s(q+3)}, 0x20000")

    def build(self):
        a, c = self.a, self.c
        S, FL = c["S"], c["FL"]
        a(f"{NAME}:")
        a("s_cmp_ge_u32 s2, 256\ns_cbranch_scc1 L_done")
        a(f"s_load_dwordx16 {s(ARG,16)}, s[0:1], 0\ns_load_dwordx8 {s(ARG+16,8)}, s[0:1], 64\ns_load_dwordx2 {s(WSSRD,2)}, s[0:1], 96")
        if c["diag"]:
            a(f"s_memrealtime s[74:75]\ns_mov_b32 {s(sStampN)}, 1\nv_mov_b32 {v(vStamp)}, 0")
        a(f"v_lshrrev_b32 {v(vT)}, 6, {v(vTid)}\nv_and_b32 {v(vLane)}, 63, {v(vTid)}")
        a(f"v_readfirstlane_b32 {s(sW)}, {v(vT)}")
        a(f"v_lshlrev_b32 {v(vL16)}, 4, {v(vLane)}")
        if c["hmap"] == "l":
            a(f"s_and_b32 {s(sH)}, s2, 31\ns_lshr_b32 {s(sSp)}, s2, 5")
        else:
            a(f"s_lshr_b32 {s(sH)}, s2, 3\ns_and_b32 {s(sSp)}, s2, 7")
        a(f"s_lshl_b32 {s(sR)}, {s(sH)}, 3\ns_add_u32 {s(sR)}, {s(sR)}, {s(sSp)}")
        a(f"s_lshl_b32 {s(sT0)}, {s(sR)}, 20\ns_lshl_b32 {s(sKV)}, {s(sW)}, 10\ns_mov_b32 {s(sVV)}, {s(sKV)}")
        if c["phase"] == "gi":
            a(f"s_bfe_u32 {s(sPh)}, s2, 0x30003\ns_lshl_b32 {s(sPh)}, {s(sPh)}, 16")
        else:
            a(f"s_mov_b32 {s(sPh)}, 0")
        self.srd(KSRD, 1 << 20); self.srd(WQSRD, 4 << 20); self.srd(XSRD, 1024)
        a(f"v_lshrrev_b32 {v(vU)}, 4, {v(vLane)}\nv_and_b32 {v(vT)}, 0xf0, {v(vL16)}")
        a(f"v_lshl_add_u32 {v(vWq)}, {v(vU)}, 18, {v(vT)}\nv_lshl_add_u32 {v(vWo)}, {v(vU)}, 15, {v(vT)}")
        a(f"s_lshl_b32 {s(sWoff)}, {s(sW)}, 20\ns_lshl_b32 {s(sT1)}, {s(sH)}, 8\ns_add_u32 {s(sWoff)}, {s(sWoff)}, {s(sT1)}")
        a("s_waitcnt lgkmcnt(0)")
        if c["diag"]:
            a(f"v_writelane_b32 {v(vStamp)}, s74, 0")
        a(f"s_mov_b64 {s(XSRD,2)}, {s(ARG,2)}")
        a(f"s_add_u32 {s(KSRD)}, {s(ARG+2)}, {s(sT0)}\ns_addc_u32 {s(KSRD+1)}, {s(ARG+3)}, 0")
        self.vmem(f"buffer_load_dwordx4 {v(vX,4)}, {v(vL16)}, {s(XSRD,4)}, 0 offen", "x")
        a(f"s_add_u32 {s(VSRD)}, {s(ARG+4)}, {s(sT0)}\ns_addc_u32 {s(VSRD+1)}, {s(ARG+5)}, 0")
        a(f"s_mov_b64 {s(WQSRD,2)}, {s(ARG+6,2)}")
        def small_loads():
            for q, arg, size in ((W1SRD, 12, 3584), (B1SRD, 14, 3584), (W2SRD, 16, 3584), (B2SRD, 18, 2), (WOSRD, 8, 4 << 20), (OUTSRD, 20, 1024)):
                a(f"s_mov_b64 {s(q,2)}, {s(ARG+arg,2)}")
                self.srd(q, size)
            self.srd(WSSRD, (4 << 20) if c["diag"] else WS_SIZE)
            a(f"v_lshlrev_b32 {v(vT)}, 4, {v(vTid)}\nv_mov_b32 {v(vP)}, 0")
            self.vmem(f"buffer_load_dwordx4 {v(vW1,4)}, {v(vT)}, {s(W1SRD,4)}, 0 offen", "w1")
            self.vmem(f"buffer_load_dwordx4 {v(vB1,4)}, {v(vT)}, {s(B1SRD,4)}, 0 offen", "b1")
            self.vmem(f"buffer_load_ushort {v(vB2)}, {v(vP)}, {s(B2SRD,4)}, 0 offen", "b2")
            self.vmem(f"buffer_load_dwordx4 {v(vW2,4)}, {v(vT)}, {s(W2SRD,4)}, 0 offen", "w2")
        def layernorm():
            a(f"s_mov_b32 {s(sHiM)}, 0xffff0000\ns_mov_b32 {s(sLog2e)}, {fbits(LOG2E)}")
            a(f"v_and_b32 {v(vT)}, 1, {v(vLane)}\nv_lshlrev_b32 {v(vT)}, 4, {v(vT)}\nv_mov_b32 {v(vU)}, 0xffff\nv_lshlrev_b32 {v(vU)}, {v(vT)}, {v(vU)}")
            a(f"v_bfe_u32 {v(vT)}, {v(vLane)}, 1, 2\nv_mov_b32 {v(vP)}, 0x0c0c0c0c\ns_mov_b32 {s(sT0)}, 0x01000100\ns_mov_b32 {s(sT1)}, 0x03020302")
            for k in range(4):
                a(f"v_cmp_eq_u32 vcc, {k}, {v(vT)}\nv_cndmask_b32 {v(vMask+k)}, 0, {v(vU)}, vcc")
            for k in range(4):
                a(f"v_bfi_b32 {v(vSel0+k)}, {v(vMask+k)}, {s(sT0)}, {v(vP)}\nv_bfi_b32 {v(vSel1+k)}, {v(vMask+k)}, {s(sT1)}, {v(vP)}")
            a(f"v_and_b32 {v(vAD)}, 15, {v(vLane)}\nv_lshlrev_b32 {v(vAD)}, 5, {v(vAD)}\nv_and_b32 {v(vT)}, 16, {v(vLane)}\nv_add_u32 {v(vAD)}, {v(vAD)}, {v(vT)}")
            a(f"v_mov_b32 {v(vM)}, 0xff800000\nv_mov_b32 {v(vL)}, 0")
            f, mean, sd, rs, t = vTmp, vTmp + 8, vTmp + 9, vTmp + 10, vTmp + 11
            self.wait_for("x")
            self.stamp()
            self.ln_sum(f, mean, t)
            self.ln_var(f, mean, sd, rs, t)
            for k in range(4):
                self.ln_pair(vX + k, f + 2*k, f + 2*k + 1, mean, sd, rs, t)
            a(f"s_lshl_b32 {s(sT0)}, {s(sW)}, 10\nv_add_u32 {v(vT)}, {s(sT0)}, {v(vL16)}")
            a(f"ds_write_b128 {v(vT)}, {v(vX,4)} offset:{XN}")
            a(f"s_mul_i32 {s(sT0)}, {s(sW)}, 1280\nv_and_b32 {v(vT)}, 0x30, {v(vLane)}\nv_lshlrev_b32 {v(vT)}, 2, {v(vT)}\nv_add_u32 {v(vT)}, {s(sT0)}, {v(vT)}")
            a("s_waitcnt lgkmcnt(0)")
            for k in range(4):
                a(f"ds_read_b128 {v(vSrc+4*k,4)}, {v(vT)} offset:{XN + 16*k}")
        self.pro_total = S
        side = self.side_blocks()
        for _ in range(c["pre"]):
            self.kv_load()
        a(f"s_load_dword {s(sTag)}, {s(WSSRD,2)}, 0")
        if c["ctl2"]:
            a(f"s_lshr_b32 {s(sPgO)}, s2, 3\ns_mul_i32 {s(sPgO)}, {s(sPgO)}, 4352\ns_add_u32 {s(sPgO)}, {s(sPgO)}, {WS_PG}")
            a(f"s_load_dword {s(sBase)}, {s(WSSRD,2)}, {s(sPgO)}")
        small_loads()
        credit = 0.0
        def paced():
            if self.nxt >= c["flp"]:
                self.wait_for(("kv", self.nxt - c["flp"]))
            self.kv_load()
        for t in range(32):
            if t == c["ln_at"]:
                layernorm()
            if t >= c["side_at"] and (t - c["side_at"]) % c["side_step"] == 0 and side:
                side.pop(0)()
            self.vmem(f"buffer_load_dwordx4 a[{4*t}:{4*t+3}], {v(vWq)}, {s(WQSRD,4)}, {s(sWoff)} offen {c['wflags']}", ("wq", t))
            if t < 31:
                a(f"s_add_u32 {s(sWoff)}, {s(sWoff)}, 8192")
            credit += c["kvper"]
            while credit >= 1 and self.nxt < self.pro_total - c["post"]:
                paced(); credit -= 1
        while self.nxt < self.pro_total - c["post"]:
            paced()
        a(f"s_lshl_b32 {s(sWoff)}, {s(sH)}, 17\ns_lshl_b32 {s(sT1)}, {s(sW)}, 8\ns_add_u32 {s(sWoff)}, {s(sWoff)}, {s(sT1)}")
        a("s_waitcnt lgkmcnt(0)")
        self.stamp()
        gemv_waits = [min(63, len(self.vm) - 1 - self.vm.index(("wq", t))) for t in range(32)]
        a(f"s_call_b64 {s(LINK,2)}, L_gemv")
        self.stamp()
        a(f"s_lshl_b32 {s(sT0)}, {s(sW)}, 9\nv_add_u32 {v(vU)}, {s(sT0)}, {v(vAD)}")
        a(f"ds_write_b128 {v(vU)}, {v(vG,4)} offset:{QP}")
        while self.nxt < self.pro_total:
            self.kv_load()
        a(f"v_and_b32 {v(vT)}, 0xf0, {v(vL16)}\nv_lshlrev_b32 {v(vT)}, 1, {v(vT)}")
        a("s_waitcnt lgkmcnt(0)\ns_barrier")
        for w in range(4):
            for hf in range(2):
                dst = (vSrc + 8*w + 4*hf) if w < 2 else (vTmp + 8*(w-2) + 4*hf)
                a(f"ds_read_b128 {v(dst,4)}, {v(vT)} offset:{QP + 512*w + 16*hf}")
        a(f"s_add_u32 {s(sTag)}, {s(sTag)}, 1\ns_and_b32 {s(sTag)}, {s(sTag)}, 0xff")
        a("s_waitcnt lgkmcnt(0)")
        for k in range(8):
            a(f"v_add_f32 {v(vSrc+k)}, {v(vSrc+k)}, {v(vSrc+8+k)}\nv_add_f32 {v(vTmp+k)}, {v(vTmp+k)}, {v(vTmp+8+k)}")
        for k in range(8):
            a(f"v_add_f32 {v(vSrc+k)}, {v(vSrc+k)}, {v(vTmp+k)}")
        for k in range(4):
            a(f"v_cvt_pk_bf16_f32 {v(vQ+k)}, {v(vSrc+2*k)}, {v(vSrc+2*k+1)}")
        self.stamp()

        a(f"s_lshl_b32 {s(sT0)}, {s(sW)}, 14\nv_add_u32 {v(vLa)}, {s(sT0)}, {v(vL16)}")
        self.fill = []
        assert not side
        side = self.late_blocks()
        n = 0
        while True:
            self.kstep(n)
            if n >= c["wo_start"] and (n - c["wo_start"]) % c["wo_every"] == 0 and self.nwo < 32:
                self.wo_load()
            if side and n >= c["R0"] + 8:
                blk = side.pop(0)
                if blk:
                    blk()
            n += 1
            if n % R == 0:
                self.stamp()
                if n >= c["R0"] and self.nwo == 32 and not side and self.nxt == self.steady(n - 1):
                    break
        self.c["alpha"] = 0
        def kloop(m):
            sw = None
            if self.nxt <= n + R < self.steady(m):
                assert self.nxt == n + R
                sw = (f"s_cmp_eq_u32 {s(sCnt)}, 1\ns_cselect_b64 {s(KSRD,2)}, {s(VSRD,2)}, {s(KSRD,2)}\n"
                      f"s_cselect_b32 {s(sKV)}, {s(sVV)}, {s(sKV)}")
            self.kstep(m, sw)
        self.loop("L_loop1", n, (256 - n) // R, kloop, 0, c["ctl1"])
        for t in self.fill + self.dpp_ops(255) + self.post_ops(63):
            a(t)
        a(f"s_lshl_b32 {s(sT0)}, {s(sW)}, 14\nv_add_u32 {v(vLa)}, {s(sT0)}, {v(vL16)}")
        for ror in (8, 4):
            a(f"v_max_f32_dpp {v(vM)}, {v(vM)}, {v(vM)} row_ror:{ror} row_mask:0xf bank_mask:0xf")
        self.rowreduce([vM], vT, "max")
        a(f"s_lshl_b32 {s(sT0)}, {s(sW)}, 2\nv_mov_b32 {v(vP)}, {s(sT0)}")
        a(f"ds_write_b32 {v(vP)}, {v(vM)} offset:{MLW}\ns_waitcnt lgkmcnt(0)\ns_barrier")
        a(f"ds_read_b128 {v(vTmp,4)}, {v(vZero)} offset:{MLW}")
        a(f"ds_read_b128 {v(vSc,4)}, {v(vLa)} offset:{SC}\nv_add_u32 {v(vLa)}, 0x400, {v(vLa)}")
        a("s_waitcnt lgkmcnt(1)")
        a(f"v_max3_f32 {v(vM)}, {v(vTmp)}, {v(vTmp+1)}, {v(vTmp+2)}\nv_max_f32 {v(vM)}, {v(vM)}, {v(vTmp+3)}")
        a(f"v_mul_f32 {v(vML)}, {s(sLog2e)}, {v(vM)}\nv_or_b32 {v(vM)}, {v(vM)}, {v(vTagV)}\ns_waitcnt lgkmcnt(0)")
        for t in self.p_ops(0):
            a(t)
        assert c["ctl2"] or not c["ctl1"]
        self.fill = []
        a("s_nop 1")
        self.loop("L_loop2", 0, 16 - c["tail"] // R, self.vstep, 256, c["ctl2"])
        if c["tail"]:
            t0 = 256 - c["tail"]
            self.nxt, self.used = self.steady(255 + t0), 256 + t0
            if c["ctl2"]:
                a(f"s_cmp_lg_u32 {s(sState)}, 0\ns_cbranch_scc1 L_tail")
                self.kv_load()
                a("L_tail:")
            self.vm = [("kv", i) for i in range(self.used, self.nxt)]
            self.in_tail = True
            for k in range(t0, 256):
                self.vstep(k)
                if k == 252:
                    for ror in (8, 4):
                        a(f"v_add_f32_dpp {v(vL)}, {v(vL)}, {v(vL)} row_ror:{ror} row_mask:0xf bank_mask:0xf")
                    self.rowreduce([vL], vT)
                    a(f"ds_write_b32 {v(vP)}, {v(vL)} offset:{MLW + 16}")
                if k % R == R - 1:
                    self.stamp()

        assert c["tail"]
        a(f"ds_write_b128 {v(vU)}, {v(vO,4)} offset:{OP}")
        a("s_waitcnt lgkmcnt(0)\ns_barrier")
        op, lw = vSrc, vSrc + 8
        for w in range(4):
            a(f"ds_read_b64 {v(op+2*w,2)}, {v(vOa)} offset:{OP + 512*w}")
        a(f"ds_read_b128 {v(lw,4)}, {v(vZero)} offset:{MLW + 16}")
        o0, o1, hi, lo = vTmp + 8, vTmp + 9, vTmp + 10, vTmp + 11
        a("s_waitcnt lgkmcnt(3)")
        a(f"v_add_f32 {v(o0)}, {v(op)}, {v(op+2)}\nv_add_f32 {v(o1)}, {v(op+1)}, {v(op+3)}")
        a("s_waitcnt lgkmcnt(1)")
        a(f"v_add_f32 {v(op+4)}, {v(op+4)}, {v(op+6)}\nv_add_f32 {v(op+5)}, {v(op+5)}, {v(op+7)}")
        a(f"v_add_f32 {v(o0)}, {v(o0)}, {v(op+4)}\nv_add_f32 {v(o1)}, {v(o1)}, {v(op+5)}")
        a(f"v_cvt_pk_bf16_f32 {v(hi)}, {v(o0)}, {v(o1)}")
        a(f"ds_write_b32 {v(vHw)}, {v(hi)} offset:{OH}")
        self.unpack(vTmp + 12, vTmp + 13, hi)
        a(f"v_sub_f32 {v(o0)}, {v(o0)}, {v(vTmp+12)}\nv_sub_f32 {v(o1)}, {v(o1)}, {v(vTmp+13)}")
        a(f"v_cvt_pk_bf16_f32 {v(lo)}, {v(o0)}, {v(o1)}")
        a(f"ds_write_b32 {v(vHw)}, {v(lo)} offset:{OH+256}")
        a("s_waitcnt lgkmcnt(2)")
        a(f"v_add_f32 {v(vTmp)}, {v(lw)}, {v(lw+1)}\nv_add_f32 {v(vTmp+1)}, {v(lw+2)}, {v(lw+3)}")
        for k in range(4):
            a(f"ds_read_b128 {v(vSrc+4*k,4)}, {v(vHr)} offset:{OH + 16*k}")
        a(f"v_add_f32 {v(vTmp)}, {v(vTmp)}, {v(vTmp+1)}\nv_bfi_b32 {v(vM+1)}, {v(vFF)}, {v(vTagV)}, {v(vTmp)}")
        a(f"s_cmp_lg_u32 {s(sW)}, 3\ns_cbranch_scc1 L_norec\ns_mov_b64 exec, 1")
        if c.get("mlstore", 1):
            a(f"buffer_store_dwordx2 {v(vM,2)}, {v(vZero)}, {s(WSSRD,4)}, {s(sMo)} offen sc1")
        a("s_mov_b64 exec, -1\nL_norec:")
        a("s_waitcnt lgkmcnt(0)")
        self.stamp()
        a(f"s_call_b64 {s(LINK,2)}, L_gemv")
        if c["ystore"] == 2:
            for k in range(2):
                a(f"v_permlane32_swap_b32 {v(vG+k)}, {v(vG+2+k)}")
            for k in range(2):
                a(f"v_add_f32 {v(vG+k)}, {v(vG+k)}, {v(vG+2+k)}")
            for k in range(2):
                a(f"v_bfi_b32 {v(vG+k)}, {v(vFF)}, {v(vTagV)}, {v(vG+k)}")
            a(f"buffer_store_dwordx2 {v(vG,2)}, {v(vYs)}, {s(WSSRD,4)}, {s(sYo)} offen {c['yflags']}")
        else:
            for k in range(4):
                a(f"v_mov_b32 {v(vTmp+k)}, {v(vG+k)}")
            for k in range(4):
                a(f"v_permlane32_swap_b32 {v(vG+k)}, {v(vTmp+k)}")
            for k in range(4):
                a(f"v_add_f32 {v(vG+k)}, {v(vG+k)}, {v(vTmp+k)}")
            for k in range(4):
                a(f"v_bfi_b32 {v(vG+k)}, {v(vFF)}, {v(vTagV)}, {v(vG+k)}")
            a("s_mov_b32 exec_hi, 0")
            if c["ystore"] == 4:
                a(f"buffer_store_dwordx4 {v(vG,4)}, {v(vAD)}, {s(WSSRD,4)}, {s(sYo)} offen {c['yflags']}")
            a("s_mov_b32 exec_hi, -1")
        self.stamp()
        a(f"s_cmp_ge_u32 s2, {c['ncons']}\ns_cbranch_scc1 L_fin")

        Y, ML2, Bv = vRing, vRing + 16, vRing + 24
        cl, ml, e, lsum, acc, bad = vRing + 28, vRing + 44, vRing + 54, vRing + 58, vRing + 62, vRing + 66
        a(f"s_mov_b32 {s(sCnt)}, {c['spin']}\ns_mov_b32 {s(sWarm)}, 0\ns_mov_b32 {s(sCoef)}, 0")
        a(f"s_mov_b64 {s(sInvM,2)}, -1\ns_mov_b64 {s(sInvY,2)}, -1")
        def yloads():
            for i in range(4):
                a(f"buffer_load_dwordx4 {v(Y+4*i,4)}, {v(vYo)}, {s(WSSRD,4)}, {s(sYi+i)} offen sc1")
        if c["early_y"]:
            yloads()
        else:
            a(f"v_not_b32 {v(Y)}, {v(vTagV)}")
        a("L_poll:")
        a(f"s_mov_b64 exec, {s(sInvM,2)}")
        for i in range(4):
            a(f"buffer_load_dwordx2 {v(ML2+2*i,2)}, {v(vMo)}, {s(WSSRD,4)}, {s(sMi+i)} offen sc1")
        a(f"buffer_load_dword {v(Bv)}, {v(vCb)}, {s(WSSRD,4)}, {s(sBo)} offen sc1")
        a(f"s_andn2_b64 exec, {s(sInvY,2)}, {s(sInvM,2)}\ns_cbranch_execz L_noy")
        a("L_polly:")
        yloads()
        a(f"L_noy:\ns_mov_b64 exec, -1\ns_cmp_lg_u32 {s(sCoef)}, 0\ns_cbranch_scc1 L_y")
        a("s_waitcnt vmcnt(0)")
        for k in range(9):
            a(f"v_xor_b32 {v(ml+k)}, {v(vTagV)}, {v(ML2+k)}")
        a(f"v_or3_b32 {v(bad)}, {v(ml)}, {v(ml+1)}, {v(ml+2)}")
        for k in (3, 5, 7):
            a(f"v_or3_b32 {v(bad)}, {v(bad)}, {v(ml+k)}, {v(ml+k+1)}")
        a(f"v_and_b32 {v(bad)}, 0xff, {v(bad)}\nv_cmp_ne_u32 {s(sInvM,2)}, 0, {v(bad)}")
        if c["early_y"]:
            a(f"s_cmp_eq_u32 {s(sWarm)}, 0\ns_cbranch_scc1 L_coef\ns_cmp_lg_u64 {s(sInvM,2)}, 0\ns_cbranch_scc1 L_y")
        else:
            a(f"s_cmp_eq_u64 {s(sInvM,2)}, 0\ns_cbranch_scc1 L_all\ns_cmp_eq_u32 {s(sWarm)}, 0\ns_cbranch_scc1 L_coef\ns_branch L_y\nL_all:")
        a(f"s_mov_b64 exec, {s(sInvY,2)}\ns_cbranch_execz L_noy2")
        yloads()
        a("L_noy2:\ns_mov_b64 exec, -1")
        a(f"L_coef:\ns_cmp_eq_u64 {s(sInvM,2)}, 0\ns_cselect_b32 {s(sCoef)}, 1, 0")
        def over_splits(op, dst, src):
            for step, ror in enumerate((4, 8)):
                for i in range(4):
                    x = src + i if step == 0 else dst + i
                    a(f"v_{op}_f32_dpp {v(dst+i)}, {v(x)}, {v(x)} row_ror:{ror} row_mask:0xf bank_mask:0xf")
            for i in range(4):
                a(f"v_mov_b32 {v(acc+i)}, {v(dst+i)}")
            for i in range(4):
                a(f"v_permlane16_swap_b32 {v(dst+i)}, {v(acc+i)}")
            for i in range(4):
                a(f"v_{op}_f32 {v(dst+i)}, {v(dst+i)}, {v(acc+i)}")
        for i in range(4):
            a(f"v_mul_f32 {v(e+i)}, {s(sLog2e)}, {v(ml+2*i)}")
        over_splits("max", lsum, e)
        for i in range(4):
            a(f"v_sub_f32 {v(e+i)}, {v(e+i)}, {v(lsum+i)}")
        for i in range(4):
            a(f"v_exp_f32 {v(e+i)}, {v(e+i)}")
        for i in range(4):
            a(f"v_mul_f32 {v(lsum+i)}, {v(e+i)}, {v(ml+2*i+1)}")
        over_splits("add", lsum, lsum)
        for i in range(4):
            a(f"v_rcp_f32 {v(lsum+i)}, {v(lsum+i)}")
        for i in range(4):
            a(f"v_mul_f32 {v(e+i)}, {v(e+i)}, {v(lsum+i)}")
        a("L_y:\ns_waitcnt vmcnt(0)")
        for k in range(16):
            a(f"v_xor_b32 {v(cl+k)}, {v(vTagV)}, {v(Y+k)}")
        a(f"v_or3_b32 {v(bad)}, {v(cl)}, {v(cl+1)}, {v(cl+2)}\nv_or3_b32 {v(bad+1)}, {v(cl+3)}, {v(cl+4)}, {v(cl+5)}")
        for k in range(6, 16, 2):
            b = bad + ((k >> 1) & 1)
            a(f"v_or3_b32 {v(b)}, {v(b)}, {v(cl+k)}, {v(cl+k+1)}")
        a(f"v_bitop3_b32 {v(bad)}, {v(bad)}, {v(bad+1)}, {v(vFF)} bitop3:0xa8")
        a(f"v_cmp_ne_u32 {s(sInvY,2)}, 0, {v(bad)}")
        for k in range(4):
            a(f"v_mul_f32 {v(acc+k)}, {v(e)}, {v(cl+k)}")
        a(f"s_or_b64 {s(sInv,2)}, {s(sInvY,2)}, {s(sInvM,2)}\ns_cbranch_scc0 L_sum\ns_cmp_eq_u32 {s(sWarm)}, 0\ns_cbranch_scc1 L_sum")
        a("L_again:")
        a(f"s_sub_u32 {s(sCnt)}, {s(sCnt)}, 1\ns_cmp_eq_u32 {s(sCnt)}, 0\ns_cbranch_scc1 L_store")
        a(f"s_mov_b64 exec, {s(sInvY,2)}\ns_cmp_lg_u32 {s(sCoef)}, 0\ns_cbranch_scc1 L_polly")
        if c["nap"]:
            a(f"s_sleep {c['nap']}")
        a("s_branch L_poll")
        a(f"L_sum:\ns_mov_b32 {s(sWarm)}, 1")
        for i in range(1, 4):
            for k in range(4):
                a(f"v_fmac_f32 {v(acc+k)}, {v(e+i)}, {v(cl+4*i+k)}")
        for k in (0, 2):
            a(f"v_permlane32_swap_b32 {v(acc+k)}, {v(acc+k+1)}")
        for k in (0, 2):
            a(f"v_add_f32 {v(acc+k)}, {v(acc+k)}, {v(acc+k+1)}")
        a(f"v_permlane16_swap_b32 {v(acc)}, {v(acc+2)}\nv_add_f32 {v(acc)}, {v(acc)}, {v(acc+2)}")
        for ror in (8, 4):
            a(f"v_add_f32_dpp {v(acc)}, {v(acc)}, {v(acc)} row_ror:{ror} row_mask:0xf bank_mask:0xf")
        a(f"ds_write_b32 {v(vRw)}, {v(acc)} offset:{RED}")
        a(f"s_cmp_lg_u64 {s(sInv,2)}, 0\ns_cbranch_scc1 L_again")
        a("L_store:\ns_mov_b64 exec, -1\ns_waitcnt lgkmcnt(0)\ns_barrier")
        a(f"s_cmp_lg_u32 {s(sW)}, 0\ns_cbranch_scc1 L_fin")
        a(f"ds_read_b128 {v(acc,4)}, {v(vRr)} offset:{RED}")
        a("s_mov_b32 exec_lo, 0xf000f\ns_mov_b32 exec_hi, 0xf000f\ns_waitcnt lgkmcnt(0)")
        a(f"v_add_f32 {v(acc)}, {v(acc)}, {v(acc+1)}\nv_add_f32 {v(acc+2)}, {v(acc+2)}, {v(acc+3)}\nv_add_f32 {v(acc)}, {v(acc)}, {v(acc+2)}")
        self.round1(acc)
        a(f"v_add_f32 {v(acc)}, {v(acc)}, {v(vXf)}")
        self.round1(acc)
        a(f"v_add_f32 {v(acc)}, {v(acc)}, {v(ml+8)}\nv_cvt_pk_bf16_f32 {v(acc)}, {v(acc)}, {v(acc)}")
        a(f"buffer_store_short {v(acc)}, {v(vCo)}, {s(OUTSRD,4)}, {s(sOo)} offen {c['outflags']}")
        a("s_mov_b64 exec, 1")
        a("s_cmp_lg_u32 s2, 0\ns_cbranch_scc1 L_fin0")
        a(f"buffer_store_dword {v(vTagV)}, {v(vZero)}, {s(WSSRD,4)}, 0 offen")
        a("L_fin0:\ns_mov_b64 exec, -1")
        a("L_fin:")
        if c["diag"]:
            self.stamp()
            a(f"s_getreg_b32 {s(sT0)}, hwreg(HW_REG_XCC_ID)\ns_mov_b32 m0, 63\nv_writelane_b32 {v(vStamp)}, {s(sT0)}, m0")
            a(f"s_mov_b32 m0, 62\nv_writelane_b32 {v(vStamp)}, {s(sStampN)}, m0")
            if c["diag"] == 2:
                a(f"s_load_dwordx2 s[24:25], s[0:1], 88\ns_mov_b32 s26, 256\ns_mov_b32 s27, 0x20000")
                picks = [0, 0, 1, 2, 4, 10, 20, 21, 35, 36, 37, 38, 39]
                a(f"v_mov_b32 {v(vP)}, 0")
                for j, st in enumerate(picks):
                    a(f"v_readlane_b32 {s(sT0)}, {v(vStamp)}, {st}")
                    if j == 0:
                        a(f"s_nop 1\ns_not_b32 {s(sT0)}, {s(sT0)}")
                    a(f"s_nop 3\nv_writelane_b32 {v(vP)}, {s(sT0)}, {j}")
                a(f"v_lshlrev_b32 {v(vT)}, 2, {v(vLane)}\ns_waitcnt lgkmcnt(0)\ns_mov_b64 exec, {hex((1 << len(picks)) - 1)}")
                a(f"buffer_atomic_umax {v(vP)}, {v(vT)}, s[24:27], 0 offen sc1\ns_mov_b64 exec, -1")
            a(f"s_lshl_b32 {s(sT0)}, s2, 10\ns_add_u32 {s(sT0)}, {s(sT0)}, {WS_DIAG}\nv_lshlrev_b32 {v(vT)}, 2, {v(vTid)}")
            a(f"buffer_store_dword {v(vStamp)}, {v(vT)}, {s(WSSRD,4)}, {s(sT0)} offen")
        a("L_done:\ns_endpgm")

        a("L_gemv:")
        def perms(t):
            sel = vSel1 if t & 1 else vSel0
            A = vA if t & 1 else vO
            for k in range(4):
                a(f"v_perm_b32 {v(A+k)}, {v(vSrc+t//2)}, {v(vSrc+t//2)}, {v(sel+k)}")
        perms(0)
        for t in range(32):
            if t < 31:
                perms(t + 1)
            if t == 0 or t >= 32 - c["gw"]:
                a(f"s_waitcnt vmcnt({gemv_waits[max(t, 31 - c['gw'])]})")
            a(f"v_mfma_f32_16x16x32_bf16 {v(vG,4)}, {v(vA if t & 1 else vO,4)}, a[{4*t}:{4*t+3}], " + ("0" if t == 0 else v(vG, 4)))
        for k in range(4):
            a(f"v_mov_b32 {v(vO+k)}, 0")
        a(f"s_nop 7\ns_setpc_b64 {s(LINK,2)}")

        return self.a.finish()

HEADER = open("parallel_sum__mha_block_cached__mixer_token_mlp__decode.s.ref").read().split("; Override launch")[0]

def make(**kw):
    g = Gen(**kw)
    body = g.build()
    nv = vRing + max(4 * g.c["R0"], 72)
    acc = (nv + 3) // 4 * 4
    return (HEADER + f"; @launch grid=(256,1,1) block=(256,1,1) lds={LDS_SIZE}\n"
            + '.amdgcn_target "amdgcn-amd-amdhsa--gfx950"\n.text\n'
            + f".globl {NAME}\n.p2align 8\n.type {NAME},@function\n" + body
            + f""".section .rodata,"a"
.p2align 6
.amdhsa_kernel {NAME}
  .amdhsa_next_free_vgpr {acc + 128}
  .amdhsa_next_free_sgpr 102
  .amdhsa_accum_offset {acc}
  .amdhsa_group_segment_fixed_size 0
  .amdhsa_kernarg_size 104
  .amdhsa_user_sgpr_count 2
  .amdhsa_user_sgpr_kernarg_segment_ptr 1
  .amdhsa_system_sgpr_workgroup_id_x 1
  .amdhsa_float_denorm_mode_32 3
.end_amdhsa_kernel
""")

if __name__ == "__main__":
    out = sys.argv[1]
    kw = {}
    for p in sys.argv[2:]:
        k, val = p.split("=", 1)
        try:
            val = int(val)
        except ValueError:
            try:
                val = float(val)
            except ValueError:
                val = val.replace("+", " ")
        kw[k] = val
    open(out, "w").write(make(**kw))
```
